```python
import torch

def _softmax(x, axis=-1):
    return torch.softmax(x, dim=axis)
def _gelu(x):
    return torch.nn.functional.gelu(x, approximate="tanh")
def _silu(x):
    return torch.nn.functional.silu(x)
def _sigmoid(x):
    return torch.sigmoid(x)
def _layernorm(x, axis=-1, eps=1e-5):
    m = x.mean(dim=axis, keepdim=True)
    v = x.var(dim=axis, keepdim=True, unbiased=False)
    return (x - m) / torch.sqrt(v + eps)
def _scatter_add(tgt, idx, src, axis=0):
    return tgt.clone().index_add_(axis, idx, src)
def _segment_sum(src, seg, n):
    out = torch.zeros((n,) + src.shape[1:], dtype=src.dtype)
    return out.index_add_(0, seg, src)
def _pad(x, pw):
    flat = tuple(v for pair in reversed(pw) for v in pair)
    return torch.nn.functional.pad(x, flat)

kernel_name = 'gated_mix__ssm_conv_s4d__linear_kernel_hedgehog__prompt'

def setup_inputs():

    _w = (lambda a: (lambda t: t.to(torch.bfloat16) if t.is_floating_point() else t)(torch.as_tensor(a)))
    def _A_setup():
        Bsz, L, D, N = 1, 2048, 512, 128
        return {
            "u": _w((lambda *s: torch.randn(*s, dtype=torch.bfloat16) * 0.05)(Bsz, L, D)),
            "log_A_real": _w((lambda *s: torch.randn(*s, dtype=torch.bfloat16) * 3.2)(D, N) * 0.5),
            "A_imag": _w((lambda *s: torch.randn(*s, dtype=torch.bfloat16) * 0.05)(D, N) * 3.14),
            "C_real": _w((lambda *s: torch.randn(*s, dtype=torch.bfloat16) * 0.4)(D, N) / N ** 0.5),
            "C_imag": _w((lambda *s: torch.randn(*s, dtype=torch.bfloat16) * 0.4)(D, N) / N ** 0.5),
            "log_dt": _w((lambda *s: torch.randn(*s, dtype=torch.bfloat16) * 0.05)(D) * 0.5 - 4.0),
            "D_skip": _w((lambda *s: torch.randn(*s, dtype=torch.bfloat16) * 0.05)(D)),
        }
    _A_in = _A_setup()

    def _B_setup():
        B, S, D, H = 1, 2048, 512, 32
        Dh = D // H
        return {
            "x": _w((lambda *s: torch.randn(*s, dtype=torch.bfloat16) * 0.05)(B, S, D)),
            "wqkv": _w((lambda *s: torch.randn(*s, dtype=torch.bfloat16) * 0.8)(D, 3 * D)),
            "w_phi": _w((lambda *s: torch.randn(*s, dtype=torch.bfloat16) * 0.8)(H, Dh, Dh) * (Dh ** -0.5)),
            "wo": _w((lambda *s: torch.randn(*s, dtype=torch.bfloat16) * 0.05)(D, D)),
        }
    _B_in = _B_setup()

    return {
        "A_u": _A_in["u"],
        "A_log_A_real": _A_in["log_A_real"],
        "A_A_imag": _A_in["A_imag"],
        "A_C_real": _A_in["C_real"],
        "A_C_imag": _A_in["C_imag"],
        "A_log_dt": _A_in["log_dt"],
        "A_D_skip": _A_in["D_skip"],
        "B_x": _B_in["x"],
        "B_wqkv": _B_in["wqkv"],
        "B_w_phi": _B_in["w_phi"],
        "B_wo": _B_in["wo"],
        "gate_w": _w((lambda *s: torch.randn(*s, dtype=torch.bfloat16) * 0.05)(512) * 16.0),
    }

def reference(A_u, A_log_A_real, A_A_imag, A_C_real, A_C_imag, A_log_dt, A_D_skip, B_x, B_wqkv, B_w_phi, B_wo, gate_w):
    def _A_ref(u, log_A_real, A_imag, C_real, C_imag, log_dt, D_skip):
        L = u.shape[1]
        dt = torch.exp(log_dt)
        A = -torch.exp(log_A_real) + 1j * A_imag
        C = (C_real + 1j * C_imag) * dt[:, None]
        pos = (lambda x, dt: x.to(dt))(torch.arange(L), log_dt.dtype)
        P = torch.exp((A * dt[:, None])[:, :, None] * pos[None, None, :])
        K = 2.0 * torch.einsum("dn,dnl->dl", C, P).real
        L2 = 2 * L
        u_t = (lambda x, *d: x.permute(*d))(u, 0, 2, 1)
        Kf = (lambda x, *a, **k: torch.fft.rfft(x.float(), *a, **k))(K, L2)
        Uf = (lambda x, *a, **k: torch.fft.rfft(x.float(), *a, **k))(u_t, L2)
        y = (lambda x, *a, **k: torch.fft.irfft(x, *a, **k).to(torch.bfloat16))(Uf * Kf[None, :, :], L2)[:, :, :L]
        y = (lambda x, *d: x.permute(*d))(y, 0, 2, 1)
        return y + u * D_skip[None, None, :]

    def _B_ref(x, wqkv, w_phi, wo):
        B, S, D = x.shape
        H = 32; Dh = D // H
        qkv = (lambda x, *d: x.permute(*d))((x @ wqkv).reshape(B, S, 3, H, Dh), 2, 0, 3, 1, 4)
        q, k, v = qkv[0], qkv[1], qkv[2]
        pq = torch.einsum("bhsd,hdf->bhsf", q, w_phi)
        pk = torch.einsum("bhsd,hdf->bhsf", k, w_phi)
        phi_q = torch.concatenate([_softmax(pq, axis=-1), _softmax(-pq, axis=-1)], axis=-1)
        phi_k = torch.concatenate([_softmax(pk, axis=-1), _softmax(-pk, axis=-1)], axis=-1)
        kv = torch.einsum("bhsf,bhsd->bhfd", phi_k, v)
        z  = torch.einsum("bhsf->bhf", phi_k)
        num = torch.einsum("bhqf,bhfd->bhqd", phi_q, kv)
        den = torch.einsum("bhqf,bhf->bhq", phi_q, z)[..., None] + 1e-6
        o = num / den
        return (lambda x, *d: x.permute(*d))(o, 0, 2, 1, 3).reshape(B, S, D) @ wo

    x = A_u
    g = _sigmoid((x * gate_w).sum(-1, keepdims=True))
    a = _A_ref(x, A_log_A_real, A_A_imag, A_C_real, A_C_imag, A_log_dt, A_D_skip)
    b = _B_ref(x, B_wqkv, B_w_phi, B_wo)
    return g * a + (1 - g) * b
```

```python
from dsl import *
WS_AT = 0x000000
WS_O  = 0x200000
WS_KV = 0x400000
KVB   = 8704
WS_GP = 0x520000
WS_ST = 0x600000
WS_DB = 0x700000
WS_SZ = 0x1000000
LOG2E = 0x3fb8aa3b
def f2u(x):
    import struct
    return '0x%08x' % struct.unpack('<I', struct.pack('<f', x))[0]
def srd(A, d, base, size, off=None):
    A('s_mov_b32', sr(d), sr(base))
    A('s_and_b32', sr(d+1), sr(base+1), '0xffff')
    A('s_mov_b32', sr(d+2), hex(size))
    A('s_mov_b32', sr(d+3), '0x20000')
def kdesc(name, vgpr, accum, sgpr=102):
    return f'''.section .rodata,"a"
.p2align 6
.amdhsa_kernel {name}
  .amdhsa_next_free_vgpr {vgpr}
  .amdhsa_next_free_sgpr {sgpr}
  .amdhsa_accum_offset {accum}
  .amdhsa_group_segment_fixed_size 0
  .amdhsa_kernarg_size 120
  .amdhsa_user_sgpr_count 2
  .amdhsa_user_sgpr_kernarg_segment_ptr 1
  .amdhsa_system_sgpr_workgroup_id_x 1
.end_amdhsa_kernel
.text
'''
def khead(name):
    return f'''.globl {name}
.p2align 8
.type {name},@function
{name}:
'''
STB = 66
def stamp(A, opt, idx):
    if not opt.get('stamps'): return
    A('s_memtime', sr(STB + 2*idx, 2))
def stamps_flush(A, opt, n, sws, swave, base):
    if not opt.get('stamps'): return
    A('s_lshl_b32', 's98', 's2', 3)
    A('s_add_u32', 's98', 's98', sr(swave))
    A('s_lshl_b32', 's98', 's98', 7)
    A('s_add_u32', 's98', 's98', hex(WS_ST + base))
    A('s_waitcnt', 'vmcnt(0) lgkmcnt(0)')
    A('v_mov_b32', 'v2', 0)
    for i in range(n):
        A('v_mov_b32', 'v0', sr(STB + 2*i))
        A('v_mov_b32', 'v1', sr(STB + 2*i + 1))
        A('buffer_store_dwordx2', 'v[0:1]', 'v2', sr(sws, 4), 's98', mods=f'offen offset:{8*i}')
        A('s_waitcnt', 'vmcnt(0)')
```

```python
import re

def vr(i, n=1):
    return f'v{i}' if n == 1 else f'v[{i}:{i+n-1}]'
def ar(i, n=1):
    return f'a{i}' if n == 1 else f'a[{i}:{i+n-1}]'
def sr(i, n=1):
    return f's{i}' if n == 1 else f's[{i}:{i+n-1}]'

_REG = re.compile(r'^(-|\|)?([vas])(\d+)\|?$')
_RNG = re.compile(r'^(-|\|)?([vas])\[(\d+):(\d+)\]\|?$')

def regs_of(o):
    if not isinstance(o, str): return set()
    o = o.strip()
    m = _REG.match(o)
    if m: return {(m.group(2), int(m.group(3)))}
    m = _RNG.match(o)
    if m: return {(m.group(2), i) for i in range(int(m.group(3)), int(m.group(4)) + 1)}
    if o in ('vcc', 'vcc_lo', 'vcc_hi'): return {('vcc', 0)}
    if o in ('exec', 'exec_lo', 'exec_hi'): return {('exec', 0)}
    if o == 'm0': return {('m0', 0)}
    return set()

TRANS = ('v_exp_f32', 'v_log_f32', 'v_rcp_f32', 'v_rsq_f32', 'v_sqrt_f32', 'v_sin_f32', 'v_cos_f32', 'v_rcp_iflag_f32')

class Ins:
    __slots__ = ('op', 'args', 'mods', 'dst', 'src', 'kind', 'passes', 'text', 'srcC', 'srcAB', 'cmt')
    def __init__(self, op, args, mods='', cmt=''):
        self.op = op; self.args = list(args); self.mods = mods; self.cmt = cmt
        self.passes = 0; self.srcC = set(); self.srcAB = set()
        a = self.args
        R = lambda xs: set().union(*[regs_of(x) for x in xs]) if xs else set()
        base = op[:-4] if op.endswith(('_e32', '_e64', '_dpp')) else op
        if op.startswith('v_mfma'):
            self.kind = 'mfma'; self.dst = R(a[:1]); self.srcAB = R(a[1:3]); self.srcC = R(a[3:4]); self.src = self.srcAB | self.srcC
            self.passes = 8 if '32x32x16' in op else 4 if '16x16x32' in op else None
            assert self.passes, op
        elif op.startswith('v_'):
            self.kind = 'valu'
            if base.startswith('v_cmpx'):
                self.dst = {('exec', 0)} | R(a[:1]); self.src = R(a[1:])
            elif base in ('v_permlane32_swap_b32', 'v_permlane16_swap_b32', 'v_swap_b32'):
                self.dst = R(a[:2]); self.src = R(a[:2])
            elif base in ('v_add_co_u32', 'v_sub_co_u32', 'v_addc_co_u32', 'v_subb_co_u32'):
                self.dst = R(a[:2]); self.src = R(a[2:])
            elif base == 'v_nop':
                self.dst = set(); self.src = set()
            else:
                self.dst = R(a[:1]); self.src = R(a[1:])
                if base.startswith(('v_fmac', 'v_mac', 'v_dot2c', 'v_pk_fmac', 'v_writelane')) or 'dpp' in op or 'row_' in mods or 'quad_perm' in mods or 'dst_sel' in mods or ('op_sel' in mods and not base.startswith(('v_pk', 'v_dot'))):
                    self.src |= self.dst
        elif op.startswith('ds_'):
            self.kind = 'ds'
            if op.startswith(('ds_read', 'ds_bpermute', 'ds_permute', 'ds_swizzle')) or '_rtn' in op:
                self.dst = R(a[:1]); self.src = R(a[1:])
            else:
                self.dst = set(); self.src = R(a)
        elif op.startswith(('buffer_', 'global_')):
            self.kind = 'vmem'
            islds = bool(re.search(r'\blds\b', mods)) or 'load_lds' in op
            if islds:
                self.dst = set(); self.src = R(a) | {('m0', 0)}; self.kind = 'dma'
            elif '_load' in op:
                self.dst = R(a[:1]); self.src = R(a[1:])
            elif 'atomic' in op and re.search(r'\bsc0\b', mods):
                if op.startswith('buffer'):
                    self.dst = R(a[:1]); self.src = R(a)
                else:
                    self.dst = R(a[:1]); self.src = R(a[1:])
            else:
                self.dst = set(); self.src = R(a)
        elif op.startswith(('s_load', 's_buffer_load', 's_memtime', 's_memrealtime', 's_atomic')):
            self.kind = 'smem'; self.dst = R(a[:1]); self.src = R(a[1:]) | (R(a[:1]) if 'atomic' in op else set())
        elif op.startswith('s_'):
            self.kind = 'salu'
            if op.startswith(('s_cmp', 's_bitcmp')) or op in ('s_waitcnt', 's_barrier', 's_nop', 's_setprio', 's_branch', 's_endpgm', 's_sleep', 's_setpc_b64', 's_setreg_b32', 's_setreg_imm32_b32') or op.startswith('s_cbranch'):
                self.dst = set(); self.src = R(a)
            else:
                self.dst = R(a[:1]); self.src = R(a[1:])
                if 'saveexec' in op: self.dst |= {('exec', 0)}; self.src |= {('exec', 0)}
                if op in ('s_addk_i32', 's_mulk_i32', 's_bitset0_b32', 's_bitset1_b32', 's_cmovk_i32', 's_cmov_b32', 's_cmov_b64'): self.src |= self.dst
        else:
            raise ValueError(op)
        t = op + (' ' + ', '.join(str(x) for x in a) if a else '') + (' ' + mods if mods else '')
        self.text = t

class Asm:
    def __init__(self):
        self.items = []
    def __call__(self, op, *args, mods='', cmt=''):
        self.items.append(Ins(op, args, mods, cmt)); return self
    def label(self, name): self.items.append(('label', name))
    def raw(self, text): self.items.append(('raw', text))
    def comment(self, text): self.items.append(('cmt', text))
    def fence(self):
        self.items.append(('fence', None))
    def mark(self, name):
        self.items.append(('mark', name))
    def waitmark(self, name, lgkm=None):
        self.items.append(('waitmark', (name, lgkm)))
    def wait(self, vm=None, lgkm=None):
        parts = []
        if vm is not None: parts.append(f'vmcnt({vm})')
        if lgkm is not None: parts.append(f'lgkmcnt({lgkm})')
        self('s_waitcnt', ' '.join(parts))
    def nop(self, n):
        while n > 0:
            k = min(n, 16); self('s_nop', k - 1); n -= k

    def finalize(self):
        out = []
        hist = []
        slot = 0
        vmq = []; lgq = []
        stats = dict(nops=0, waits=0)
        marks = {}
        def emit(ins):
            nonlocal slot
            out.append('  ' + ins.text + (f'   ; {ins.cmt}' if ins.cmt else ''))
            hist.append((slot, ins))
            slot += (int(ins.args[0]) + 1) if ins.op == 's_nop' else 1
            if len(hist) > 40: hist.pop(0)
        def do_wait(ins):
            t = ins.args[0]
            m = re.search(r'vmcnt\((\d+)\)', t)
            if m:
                n = int(m.group(1))
                while len(vmq) > n: vmq.pop(0)
            m = re.search(r'lgkmcnt\((\d+)\)', t)
            if m:
                n = int(m.group(1))
                if n == 0: lgq.clear()
                elif not any(e[1] for e in lgq):
                    while len(lgq) > n: lgq.pop(0)
        for it in self.items:
            if isinstance(it, tuple):
                if it[0] == 'label':
                    out.append(it[1] + ':')
                elif it[0] == 'raw': out.append(it[1])
                elif it[0] == 'cmt': out.append('  ; ' + it[1])
                elif it[0] == 'fence':
                    vmq.clear(); lgq.clear()
                elif it[0] == 'mark':
                    marks[it[1]] = vmq[-1] if vmq else None
                elif it[0] == 'waitmark':
                    name, lg = it[1]
                    e = marks[name]
                    idx = [i for i, q in enumerate(vmq) if q is e]
                    parts = []
                    if idx: parts.append(f'vmcnt({len(vmq) - 1 - idx[0]})')
                    if lg is not None: parts.append(f'lgkmcnt({lg})')
                    if parts:
                        assert not idx or len(vmq) - 1 - idx[0] <= 63
                        w = Ins('s_waitcnt', [' '.join(parts)], cmt=f'wait {name}')
                        do_wait(w); emit(w)
                continue
            ins = it
            touch = ins.src | ins.dst
            if ins.op != 's_waitcnt':
                vneed = None; lneed = None
                for i, (d, _) in enumerate(vmq):
                    if d & touch: vneed = len(vmq) - 1 - i
                for i, (d, sm) in enumerate(lgq):
                    if d & touch: lneed = len(lgq) - 1 - i
                if lneed is not None and any(e[1] for e in lgq): lneed = 0
                if vneed is not None or lneed is not None:
                    parts = []
                    if vneed is not None: parts.append(f'vmcnt({min(vneed, 63)})')
                    if lneed is not None: parts.append(f'lgkmcnt({min(lneed, 15)})')
                    w = Ins('s_waitcnt', [' '.join(parts)])
                    do_wait(w); emit(w); stats['waits'] += 1
            need = 0
            isvalu = ins.kind == 'valu'
            base = ins.op
            for (s, p) in hist:
                dist = slot - s - ((int(p.args[0]) + 1) if p.op == 's_nop' else 1)
                req = 0
                pv = {r for r in p.dst if r[0] in 'va'}
                ps = {r for r in p.dst if r[0] in ('s', 'vcc')}
                if p.kind == 'valu':
                    isdot = p.op.startswith('v_dot')
                    if ins.kind == 'mfma' and pv & ins.src: req = max(req, 3 if isdot else 2)
                    if isvalu and pv & ins.src:
                        if p.op.replace('_e32', '').replace('_e64', '') in TRANS and ins.op.replace('_e32', '').replace('_e64', '') not in TRANS: req = max(req, 1)
                        if base.startswith('v_permlane') or 'dpp' in base or 'row_' in ins.mods or 'quad_perm' in ins.mods: req = max(req, 2)
                        if base.startswith(('v_readlane', 'v_readfirstlane')): req = max(req, 1)
                        if ('op_sel' in p.mods and not p.op.startswith(('v_pk', 'v_dot'))) or 'dst_sel' in p.mods: req = max(req, 1)
                    if isdot and pv & touch:
                        if ins.op == p.op and not (pv & (regs_of(ins.args[1]) | regs_of(ins.args[2]))): pass
                        else: req = max(req, 3)
                    if ps & ins.src:
                        if isvalu: req = max(req, 4 if base.startswith(('v_readlane', 'v_writelane')) else 2)
                        if ins.kind in ('vmem', 'dma'): req = max(req, 5)
                    if ('exec', 0) in p.dst:
                        if ins.kind == 'mfma' or base.startswith(('v_permlane', 'v_readlane', 'v_readfirstlane', 'v_writelane')): req = max(req, 4)
                        if 'dpp' in base or 'row_' in ins.mods or 'quad_perm' in ins.mods: req = max(req, 5)
                elif p.kind == 'mfma':
                    big = 12 if p.passes == 8 else 8
                    if ins.kind == 'mfma':
                        if p.dst & ins.srcAB: req = max(req, big)
                        if p.dst & ins.srcC and not (p.dst == ins.srcC and p.passes == ins.passes): req = max(req, big - 2)
                        if p.dst & ins.dst and not (p.dst == ins.dst and p.dst == ins.srcC and p.passes == ins.passes): req = max(req, big - 2)
                    elif ins.kind in ('valu', 'ds', 'vmem', 'dma'):
                        if p.dst & touch: req = max(req, big)
                        if p.srcC & ins.dst: req = max(req, 7 if p.passes == 8 else 3)
                elif p.kind == 'salu':
                    if ('m0', 0) in p.dst and (ins.kind == 'dma' or 'addtid' in base): req = max(req, 1)
                elif p.kind == 'vmem':
                    if ('store' in p.op or 'atomic' in p.op) and ('x3' in p.op or 'x4' in p.op or 'x2' in p.op and 'cmpswap' in p.op):
                        data = regs_of(p.args[0]) if p.op.startswith('buffer') else regs_of(p.args[1])
                        if data & ins.dst: req = max(req, 2)
                need = max(need, req - dist)
            if need > 0:
                stats['nops'] += need
                while need > 0:
                    k = min(need, 16); emit(Ins('s_nop', [k - 1])); need -= k
            emit(ins)
            if ins.op == 's_waitcnt': do_wait(ins)
            elif ins.kind in ('vmem', 'dma'): vmq.append((set(ins.dst), False))
            elif ins.kind == 'ds': lgq.append((set(ins.dst), False))
            elif ins.kind == 'smem': lgq.append((set(ins.dst), True))
        self.stats = stats
        return '\n'.join(out) + '\n'

class Regs:
    def __init__(self, lo, hi):
        self.lo = lo; self.hi = hi; self.next = lo; self.names = {}; self.high = lo
    def alloc(self, name, n=1, align=1):
        p = (self.next + align - 1) // align * align
        assert p + n <= self.hi, f'out of registers allocating {name} ({p}+{n} > {self.hi})'
        self.next = p + n; self.high = max(self.high, self.next); self.names[name] = p
        return p
    def mark(self): return self.next
    def release(self, m): self.next = m
```

```python
from common import *

RS = 528
YB, XB = 0, 4*32*RS
XS = 27*RS
KB = XB + 4*XS
KS = 4576
UB = KB + 4*KS
US = 4128
assert UB + 4*US + 4 <= 163840
XIMM = 51000
XROWS = list(range(8)) + [256, 258, 260, 262, 264, 512, 516, 520, 768, 772, 776, 1024, 1032, 1280, 1288, 1536, 1544, 1792, 1800]
TILE = [[0, 1, 2, 3, 256, 256, 258, 260, 512, 516, 520, 1024, 768, 772, 776, 1536],
        [4, 5, 6, 7, 260, 260, 262, 264, 1032, 1280, 1288, 1288, 1544, 1792, 1800, 1800]]

def gen_a(A, opt):
    mimic = opt.get('mimic_a', False)
    sW = 4
    sU, sP, sWS = 40, 44, 48
    sD0, sD, sChl, sSet, sT0, sT1, sT2, sMY, sMX = 5, 6, 7, 3, 62, 63, 64, 65, 98
    vL, vT0, vT1, vT2, vT3 = 1, 2, 3, 4, 5
    vU = 8
    pA, pI, pCr, pCi, pDt, pDs = 16, 17, 18, 19, 20, 21
    A('s_and_b32', sr(sT0), 's2', 7)
    A('s_lshr_b32', sr(sT1), 's2', 3)
    A('s_sub_u32', sr(sT1), sr(sT1), 16)
    A('s_lshl_b32', sr(sD0), sr(sT0), 4)
    A('s_add_u32', sr(sD0), sr(sD0), sr(sT1))
    A('s_lshl_b32', sr(sD0), sr(sD0), 2)
    A('s_lshr_b32', sr(sChl), sr(sW), 1)
    A('s_and_b32', sr(sSet), sr(sW), 1)
    A('s_add_u32', sr(sD), sr(sD0), sr(sChl))
    A('v_lshlrev_b32', vr(vT0), 1, vr(vL))
    A('s_lshl_b32', sr(sT0), sr(sD), 1)
    A('s_add_u32', sr(sT0), sr(sT0), sr(sSet))
    A('s_lshl_b32', sr(sT0), sr(sT0), 7)
    A('s_lshl_b32', sr(sT1), sr(sD), 1)
    A('v_mov_b32', vr(vT1), 0)
    A('v_lshlrev_b32', vr(vT2), 12, 'v0')
    A('s_lshl_b32', sr(sT2), sr(sD0), 1)
    A('s_waitcnt', 'lgkmcnt(0)')
    for k, (ptr, dst) in enumerate([(18, pDt), (10, pA), (12, pI), (14, pCr), (16, pCi), (20, pDs)]):
        s = 44 + 4*(k % 4) if False else [44, 52, 56, 44, 52, 56][k]
        small = ptr in (18, 20)
        srd(A, s, ptr, 1024 if small else 512*256)
        A('buffer_load_ushort', vr(dst), vr(vT1 if small else vT0), sr(s, 4), sr(sT1 if small else sT0), mods='offen')
    srd(A, sU, 8, 2048*1024)
    for j in range(4):
        A('buffer_load_dwordx2', vr(vU + 2*j, 2), vr(vT2), sr(sU, 4), sr(sT2), mods=f'offen offset:{1024*j}' if j else 'offen')
    stamp(A, opt, 0)
    srd(A, sWS, 36, WS_SZ)
    A('v_mov_b32', vr(vT3), 0)
    A('s_mul_i32', sr(sT0), sr(sChl), KS)
    A('s_mul_i32', sr(sT1), sr(sSet), 240)
    A('s_add_u32', sr(sT0), sr(sT0), sr(sT1))
    A('s_add_u32', sr(sT0), sr(sT0), KB + 4096)
    A('v_min_u32', vr(vT1), 59, vr(vL))
    A('v_lshl_add_u32', vr(vT1), vr(vT1), 2, sr(sT0))
    A('ds_write_b32', vr(vT1), vr(vT3))
    A('s_mul_i32', sr(sT0), sr(sChl), US)
    A('s_add_u32', sr(sT0), sr(sT0), UB)
    A('v_and_b32', vr(vT1), 7, vr(vL))
    A('v_lshl_add_u32', vr(vT1), vr(vT1), 2, sr(sT0))
    A('ds_write_b32', vr(vT1), vr(vT3))
    A('s_mul_i32', sr(sMY), sr(sChl), 32*RS)
    A('s_lshl_b32', sr(sT0), sr(sSet), 8)
    A('s_add_u32', sr(sMY), sr(sMY), sr(sT0))
    A('s_mul_i32', sr(sMX), sr(sChl), XS)
    A('s_add_u32', sr(sMX), sr(sMX), sr(sT0))
    A('s_add_u32', sr(sMX), sr(sMX), XB - XIMM)
    vYa, vXa0, vXa1, vKw, vKr, vUa, vSh, vUf, vUw = 22, 23, 24, 25, 26, 28, 32, 33, 34
    A('v_and_b32', vr(vT0), 15, vr(vL))
    A('v_lshrrev_b32', vr(vT1), 4, vr(vL))
    A('v_mul_u32_u24', vr(vYa), RS, vr(vT0))
    A('v_lshl_add_u32', vr(vYa), vr(vT1), 4, vr(vYa))
    A('s_mul_i32', sr(sT0), sr(sChl), 32*RS)
    A('s_mul_i32', sr(sT1), sr(sSet), 16*RS)
    A('s_add_u32', sr(sT0), sr(sT0), sr(sT1))
    A('v_add_u32', vr(vYa), sr(sT0), vr(vYa))
    for T in range(2):
        rows = [XROWS.index(x) for x in TILE[T]]
        lo = sum(rows[i] << (8*i) for i in range(8)); hi = sum(rows[8+i] << (8*i) for i in range(8))
        d = vXa0 + T
        A('s_mov_b32', 's52', hex(lo & 0xffffffff)); A('s_mov_b32', 's53', hex(lo >> 32))
        A('s_mov_b32', 's54', hex(hi & 0xffffffff)); A('s_mov_b32', 's55', hex(hi >> 32))
        A('v_and_b32', vr(vT2), 7, vr(vT0))
        A('v_lshlrev_b32', vr(vT2), 3, vr(vT2))
        A('v_lshrrev_b64', vr(36, 2), vr(vT2), 's[52:53]')
        A('v_lshrrev_b64', vr(38, 2), vr(vT2), 's[54:55]')
        A('v_cmp_gt_u32', 'vcc', 8, vr(vT0))
        A('v_cndmask_b32', vr(d), vr(38), vr(36), 'vcc')
        A('v_and_b32', vr(d), 255, vr(d))
        A('v_mul_u32_u24', vr(d), RS, vr(d))
        A('v_lshl_add_u32', vr(d), vr(vT1), 4, vr(d))
        A('s_mul_i32', sr(sT0), sr(sChl), XS)
        A('s_add_u32', sr(sT0), sr(sT0), XB)
        A('v_add_u32', vr(d), sr(sT0), vr(d))
    A('s_mul_i32', sr(sT0), sr(sChl), KS)
    A('s_lshl_b32', sr(sT1), sr(sSet), 8)
    A('s_sub_u32', sr(sT2), sr(sT0), sr(sT1))
    A('s_add_u32', sr(sT2), sr(sT2), KB + 4080)
    A('v_lshlrev_b32', vr(vT2), 4, vr(vT0))
    A('v_lshl_add_u32', vr(vT2), vr(vT1), 9, vr(vT2))
    A('v_sub_u32', vr(vKw), sr(sT2), vr(vT2))
    vKw3 = 27
    A('v_lshlrev_b32', vr(vT2), 9, vr(vT1))
    A('v_sub_u32', vr(vKw3), vr(vKw), vr(vT2))
    A('v_subrev_u32', vr(vKw3), 512, vr(vKw3))
    A('s_add_u32', sr(sT2), sr(sT0), sr(sT1))
    A('s_add_u32', sr(sT2), sr(sT2), KB + 4064 - 3584)
    A('v_lshlrev_b32', vr(vT2), 5, vr(vT0))
    A('v_sub_u32', vr(vKr), sr(sT2), vr(vT2))
    A('v_lshl_add_u32', vr(vKr), vr(vT1), 4, vr(vKr))
    A('s_mul_i32', sr(sT0), sr(sChl), US)
    A('s_add_u32', sr(sT0), sr(sT0), UB)
    A('s_add_u32', sr(sT2), sr(sT0), sr(sT1))
    A('v_add_u32', vr(vT2), 1, vr(vT0))
    A('v_lshrrev_b32', vr(vT2), 1, vr(vT2))
    A('v_lshl_add_u32', vr(vT2), vr(vT1), 2, vr(vT2))
    A('v_lshl_add_u32', vr(vUa), vr(vT2), 2, sr(sT2))
    for k in range(1, 4): A('v_add_u32', vr(vUa+k), 1024*k, vr(vUa))
    A('v_and_b32', vr(vSh), 1, vr(vT0))
    A('v_xor_b32', vr(vSh), 1, vr(vSh))
    A('v_lshlrev_b32', vr(vSh), 4, vr(vSh))
    A('v_lshlrev_b32', vr(vUf), 5, vr(vT0))
    A('v_lshl_add_u32', vr(vUf), vr(vT1), 3, vr(vUf))
    vAo = 35
    A('v_mov_b32', vr(vAo), vr(vUf))
    A('s_lshl_b32', sr(sT1), sr(sSet), 11)
    A('s_add_u32', sr(sT0), sr(sT0), sr(sT1))
    A('s_add_u32', sr(sT0), sr(sT0), 32)
    A('v_add_u32', vr(vUf), sr(sT0), vr(vUf))
    A('v_lshlrev_b32', vr(vUw), 3, 'v0')
    A('v_add_u32', vr(vUw), UB + 32, vr(vUw))
    A('s_mov_b32', 's60', f2u(1.4426950408889634))
    def rne(v):
        A('v_cvt_pk_bf16_f32', vr(v), vr(v), vr(v))
        A('v_and_b32', vr(v), '0xffff0000', vr(v))
    for v in (pDt, pA):
        A('v_lshlrev_b32', vr(v), 16, vr(v))
        A('v_mul_f32', vr(v), 's60', vr(v))
        A('v_exp_f32', vr(v), vr(v))
        rne(v)
    stamp(A, opt, 1)
    for v in (pI, pCr, pCi): A('v_lshlrev_b32', vr(v), 16, vr(v))
    A('v_mul_f32', vr(pA), vr(pA), vr(pDt))
    A('v_mul_f32', vr(pI), vr(pI), vr(pDt))
    A('v_mul_f32', vr(pA), f2u(-1.4426950408889634), vr(pA))
    A('v_mul_f32', vr(pI), '0.15915494', vr(pI))
    A('v_add_f32', vr(pDt), vr(pDt), vr(pDt))
    W1, W8, W256, W2, W4, W32 = 40, 42, 44, 46, 48, 50
    def anchor(d, p):
        e, th = 36, 37
        if p == 1:
            A('v_exp_f32', vr(e), vr(pA)); A('v_fract_f32', vr(th), vr(pI))
        else:
            A('v_mul_f32', vr(e), f2u(p), vr(pA)); A('v_mul_f32', vr(th), f2u(p), vr(pI))
            A('v_exp_f32', vr(e), vr(e)); A('v_fract_f32', vr(th), vr(th))
        A('v_cos_f32', vr(d), vr(th)); A('v_sin_f32', vr(d+1), vr(th))
        A('v_pk_mul_f32', vr(d, 2), vr(d, 2), vr(e, 2), mods='op_sel_hi:[1,0]')
    anchor(W8, 8); anchor(W256, 256); anchor(W1, 1)
    def cmuls(lst):
        for (d, a, b) in lst: A('v_pk_mul_f32', vr(d, 2), vr(a, 2), vr(b, 2), mods='op_sel:[0,0] op_sel_hi:[0,1]')
        for (d, a, b) in lst: A('v_pk_fma_f32', vr(d, 2), vr(a, 2), vr(b, 2), vr(d, 2), mods='op_sel:[1,1,0] op_sel_hi:[1,0,1] neg_lo:[1,0,0]')
    pk = [100]
    def put(rows, isx):
        A('s_mov_b32', 'm0', sr(sMX if isx else sMY))
        regs = []
        for (row, v) in rows:
            t = pk[0]; pk[0] = 100 + (pk[0] - 100 + 1) % 16
            if v is None: A('v_mov_b32', vr(t), '0x3f80')
            else: A('v_cvt_pk_bf16_f32', vr(t), vr(v), ('-' if isx else '') + vr(v+1))
            regs.append((row, t))
        for (row, t) in regs:
            off = XIMM + XROWS.index(row)*RS if isx else row*RS
            A('ds_write_addtid_b32', vr(t), mods=f'offset:{off}')
    Y = lambda b: 52 + 2*(b % 8)
    X0 = pCr
    A('v_pk_mul_f32', vr(X0, 2), vr(X0, 2), vr(pDt, 2), mods='op_sel_hi:[1,0]')
    XA = 68
    xa = lambda i: XA + 2*i
    cmuls([(Y(2), W8, W8), (xa(0), X0, W256), (W2, W1, W1), (xa(8), X0, W1)])
    cmuls([(Y(3), Y(2), W8), (W32, Y(2), Y(2)), (xa(1), xa(0), W256), (W4, W2, W2), (xa(9), X0, W2)])
    put([(0, None), (1, W8), (2, Y(2)), (3, Y(3)), (4, W32)], False)
    cmuls([(Y(5), W8, W32), (Y(6), Y(2), W32), (Y(7), Y(3), W32), (Y(8), W32, W32), (xa(2), xa(1), W256), (xa(10), xa(8), W2), (xa(11), X0, W4), (xa(12), xa(8), W4)])
    put([(0, X0), (1, xa(8)), (2, xa(9)), (3, xa(10)), (4, xa(11)), (5, xa(12)), (256, xa(0)), (512, xa(1)), (768, xa(2))], True)
    put([(b, Y(b)) for b in range(5, 9)], False)
    chain = [(1024, 3, 2), (1280, 4, 3), (1536, 5, 4), (1792, 6, 5)]
    leaf = [(6, xa(9), W4), (7, xa(10), W4), (258, xa(0), W2), (260, xa(0), W4), (264, xa(0), W8), (516, xa(1), W4), (520, xa(1), W8),
            (772, xa(2), W4), (776, xa(2), W8), (262, None, W2), (1032, xa(3), W8), (1288, xa(4), W8), (1544, xa(5), W8), (1800, xa(6), W8)]
    sched = [([chain[0]], leaf[0:2]), ([chain[1]], leaf[2:4]), ([chain[2]], [leaf[9], leaf[4], leaf[5]]), ([chain[3]], leaf[6:9]), ([], leaf[10:13]), ([], leaf[13:14])]
    x260 = None
    for gi, (ch, lf) in enumerate(sched):
        b0 = 9 + 4*gi
        lst = [(Y(b), Y(b-4), W32) for b in range(b0, min(b0 + 4, 32))]
        rows = []
        for (row, di, si) in ch:
            lst.append((xa(di), xa(si), W256)); rows.append((row, xa(di)))
        for k, (row, src, mul) in enumerate(lf):
            d = xa(11 + k) if row != 260 else xa(7)
            if row == 262: src = xa(7)
            lst.append((d, src, mul)); rows.append((row, d))
        cmuls(lst)
        put([(b, Y(b)) for b in range(b0, min(b0 + 4, 32))], False)
        put(rows, True)
    for c in range(4):
        w = c >> 1
        sel = '0x07060302' if c & 1 else '0x05040100'
        A('s_mov_b32', sr(sT0), sel)
        A('v_perm_b32', vr(36), vr(vU + 2 + w), vr(vU + w), sr(sT0))
        A('v_perm_b32', vr(37), vr(vU + 6 + w), vr(vU + 4 + w), sr(sT0))
        A('ds_write_b64', vr(vUw), vr(36, 2), mods=f'offset:{c*US}')
        A.nop(1)
    stamp(A, opt, 2)
    A('s_waitcnt', 'lgkmcnt(0)')
    A('s_barrier')
    stamp(A, opt, 3)
    t0, t1, fY, fX = 40, 44, 48, 64
    def RK(s):
        k = s % 4
        A('ds_read_b128', vr(fY + 4*k, 4), vr(vYa), mods=f'offset:{64*s}')
        A('ds_read_b128', vr(fX + 8*k, 4), vr(vXa0), mods=f'offset:{64*s}')
        A('ds_read_b128', vr(fX + 8*k + 4, 4), vr(vXa1), mods=f'offset:{64*s}')
    for s in range(3): RK(s)
    for s in range(8):
        if s + 3 < 8: RK(s + 3)
        k = s % 4
        A('v_mfma_f32_16x16x32_bf16', vr(t0, 4), vr(fX + 8*k, 4), vr(fY + 4*k, 4), '0' if s == 0 else vr(t0, 4))
        A('v_mfma_f32_16x16x32_bf16', vr(t1, 4), vr(fX + 8*k + 4, 4), vr(fY + 4*k, 4), '0' if s == 0 else vr(t1, 4))
    o = 48
    A('v_and_b32', vr(vT2), 1, vr(vL))
    A('v_cmp_eq_u32', 'vcc', 0, vr(vT2))
    A('s_mov_b32', 'exec_hi', 0)
    A('v_cvt_pk_bf16_f32', vr(o), vr(t1+3), vr(t1+2))
    A('v_cvt_pk_bf16_f32', vr(o+1), vr(t1+1), vr(t1))
    A('v_cvt_pk_bf16_f32', vr(o+2), vr(t0+3), vr(t0+2))
    A('v_cvt_pk_bf16_f32', vr(o+3), vr(t0+1), vr(t0))
    A('s_mov_b32', 'exec_lo', 0)
    A('s_mov_b32', 'exec_hi', -1)
    A('v_cvt_pk_bf16_f32', vr(o), vr(t0+2), vr(t0+2))
    A('v_cvt_pk_bf16_f32', vr(o+1), vr(t0+1), vr(t0+1))
    A('v_cvt_pk_bf16_f32', vr(o+2), vr(t0+1), vr(t0))
    A('v_cvt_pk_bf16_f32', vr(o+3), vr(t0), vr(t0))
    for q, (own, nxt) in enumerate([(t0+3, t1), (t1+1, t1+2)]):
        d = o + 4 + 4*q
        A('v_cndmask_b32', vr(vT2), vr(nxt), vr(own), 'vcc')
        A('v_cvt_pk_bf16_f32', vr(d), vr(nxt), vr(nxt))
        A('v_cvt_pk_bf16_f32', vr(d+1), vr(nxt), vr(vT2))
        A('v_cvt_pk_bf16_f32', vr(d+2), vr(own), vr(own))
        A('v_mov_b32', vr(d+3), vr(d+2))
        A('ds_write_b128', vr(vKw3), vr(d, 4), mods='offset:512' if q == 0 else '')
    A('s_mov_b64', 'exec', -1)
    A('ds_write_b128', vr(vKw), vr(o, 4))
    A('s_waitcnt', 'lgkmcnt(0)')
    A('s_barrier')
    stamp(A, opt, 4)
    if opt.get('dumpk'):
        A('s_mul_i32', sr(sT0), sr(sChl), KS)
        A('s_add_u32', sr(sT0), sr(sT0), KB)
        A('v_lshl_add_u32', vr(vT2), vr(vL), 4, sr(sT0))
        A('v_lshlrev_b32', vr(vT3), 4, vr(vL))
        A('s_lshl_b32', sr(sT0), sr(sD), 13)
        A('s_add_u32', sr(sT0), sr(sT0), hex(WS_DB))
        for j in range(4):
            A('ds_read_b128', vr(48, 4), vr(vT2), mods=f'offset:{1024*j}')
            A('buffer_store_dwordx4', vr(48, 4), vr(vT3), sr(sWS, 4), sr(sT0), mods=f'offen offset:{1024*j}')
            A('s_waitcnt', 'vmcnt(0)')
    acc, raw, al = 40, 72, 96
    def RA(n):
        a, rr = n >> 2, n & 3
        r = raw + 6*(n % 4)
        o0 = 128*(a & 1) + 16*rr
        A('ds_read2_b32', vr(r, 2), vr(vUa + (a >> 1)), mods=f'offset0:{o0} offset1:{o0+1}')
        A('ds_read2_b32', vr(r+2, 2), vr(vUa + (a >> 1)), mods=f'offset0:{o0+2} offset1:{o0+3}')
        A('ds_read_b32', vr(r+4), vr(vUa + (a >> 1)), mods=f'offset:{4*(o0+4)}')
    def AL(n):
        r = raw + 6*(n % 4); d = al + 4*(n % 4)
        for k in range(4): A('v_alignbit_b32', vr(d+k), vr(r+k+1), vr(r+k), vr(vSh))
    def RB(rr):
        for b in range(8):
            A('ds_read_b128', ar(32*rr + 4*b, 4), vr(vKr), mods=f'offset:{3584 - 512*b + 64*rr}')
    RA(0); RB(0); RA(1); AL(0); RA(2)
    started = set()
    for n in range(32):
        a, rr = n >> 2, n & 3
        nb = 8 - a
        for b in range(nb):
            j = a + b
            A('v_mfma_f32_16x16x32_bf16', vr(acc + 4*j, 4), vr(al + 4*(n % 4), 4), ar(32*rr + 4*b, 4), vr(acc + 4*j, 4) if j in started else '0')
            started.add(j)
            if b == 0:
                if n < 3: RB(n + 1)
                if n + 3 < 32: RA(n + 3)
            if b == min(1, nb - 1) and n + 1 < 32: AL(n + 1)
    stamp(A, opt, 5)
    vEx = 36
    A('s_lshl_b32', sr(sT0), sr(sW), 12)
    A('v_lshl_add_u32', vr(vEx), vr(vL), 4, sr(sT0))
    A('v_xor_b32', vr(vEx+1), 4096, vr(vEx))
    A('s_cmp_eq_u32', sr(sSet), 0)
    A('s_cbranch_scc1', 'A_SET0')
    for j in range(4):
        A('ds_write_b128', vr(vEx), vr(acc + 4*j, 4), mods=f'offset:{1024*j}')
    for k in range(16): A('v_mov_b32', vr(acc + k), vr(acc + 16 + k))
    A('s_branch', 'A_SETX')
    A.label('A_SET0')
    A.nop(8)
    for j in range(4):
        A('ds_write_b128', vr(vEx), vr(acc + 16 + 4*j, 4), mods=f'offset:{1024*j}')
    A.label('A_SETX')
    uu, ex = 72, 80
    for j in range(4): A('ds_read_b64', vr(uu + 2*j, 2), vr(vUf), mods=f'offset:{512*j}')
    A('v_lshlrev_b32', vr(pDs), 16, vr(pDs))
    A('s_lshl_b32', sr(sT0), sr(sD), 12)
    A('s_lshl_b32', sr(sT1), sr(sSet), 11)
    A('s_add_u32', sr(sT0), sr(sT0), sr(sT1))
    A('s_waitcnt', 'lgkmcnt(0)')
    A('s_barrier')
    stamp(A, opt, 6)
    for j in range(4): A('ds_read_b128', vr(ex + 4*j, 4), vr(vEx+1), mods=f'offset:{1024*j}')
    ud = 96
    for k in range(8):
        A('v_lshlrev_b32', vr(ud + 2*k), 16, vr(uu + k))
        A('v_and_b32', vr(ud + 2*k + 1), '0xffff0000', vr(uu + k))
        if mimic:
            A('v_mul_f32', vr(ud + 2*k), vr(ud + 2*k), vr(pDs))
            A('v_mul_f32', vr(ud + 2*k + 1), vr(ud + 2*k + 1), vr(pDs))
            A('v_cvt_pk_bf16_f32', vr(uu + k), vr(ud + 2*k), vr(ud + 2*k + 1))
            A('v_lshlrev_b32', vr(ud + 2*k), 16, vr(uu + k))
            A('v_and_b32', vr(ud + 2*k + 1), '0xffff0000', vr(uu + k))
        else:
            A('v_fma_f32', vr(acc + 2*k), vr(ud + 2*k), vr(pDs), vr(acc + 2*k))
            A('v_fma_f32', vr(acc + 2*k + 1), vr(ud + 2*k + 1), vr(pDs), vr(acc + 2*k + 1))
    for k in range(8):
        A('v_pk_add_f32', vr(acc + 2*k, 2), vr(acc + 2*k, 2), vr(ex + 2*k, 2))
        if mimic:
            A('v_cvt_pk_bf16_f32', vr(uu + k), vr(acc + 2*k), vr(acc + 2*k + 1))
            A('v_lshlrev_b32', vr(acc + 2*k), 16, vr(uu + k))
            A('v_and_b32', vr(acc + 2*k + 1), '0xffff0000', vr(uu + k))
            A('v_pk_add_f32', vr(acc + 2*k, 2), vr(acc + 2*k, 2), vr(ud + 2*k, 2))
        A('v_cvt_pk_bf16_f32', vr(uu + k), vr(acc + 2*k), vr(acc + 2*k + 1))
        if k & 1:
            j = k >> 1
            A('buffer_store_dwordx2', vr(uu + 2*j, 2), vr(vAo), sr(sWS, 4), sr(sT0), mods=(f'offen offset:{512*j}' if j else 'offen') + opt.get('wt1', ''))
    if opt.get('stamps'):
        stamp(A, opt, 7)
        A('s_waitcnt', 'vmcnt(0)')
        stamp(A, opt, 8)
        stamps_flush(A, opt, 9, sWS, sW, 0)
```

```python
from common import *

E_ = 131072
def softmax_pm(A, p, ph, tmp, mimic):
    mx, mn = tmp, tmp + 2
    e = tmp + 4
    sm = tmp + 20
    if mimic:
        for k in range(8):
            A('v_cvt_pk_bf16_f32', vr(e+k), vr(p+2*k), vr(p+2*k+1))
        for k in range(8):
            A('v_lshlrev_b32', vr(p+2*k), 16, vr(e+k))
            A('v_and_b32', vr(p+2*k+1), '0xffff0000', vr(e+k))
    A('v_max3_f32', vr(mx), vr(p), vr(p+1), vr(p+2))
    A('v_min3_f32', vr(mn), vr(p), vr(p+1), vr(p+2))
    A('v_max3_f32', vr(mx+1), vr(p+3), vr(p+4), vr(p+5))
    A('v_min3_f32', vr(mn+1), vr(p+3), vr(p+4), vr(p+5))
    for k in (6, 10):
        A('v_max3_f32', vr(mx), vr(mx), vr(p+k), vr(p+k+1))
        A('v_min3_f32', vr(mn), vr(mn), vr(p+k), vr(p+k+1))
        A('v_max3_f32', vr(mx+1), vr(mx+1), vr(p+k+2), vr(p+k+3))
        A('v_min3_f32', vr(mn+1), vr(mn+1), vr(p+k+2), vr(p+k+3))
    A('v_max3_f32', vr(mx), vr(mx), vr(p+14), vr(p+15))
    A('v_min3_f32', vr(mn), vr(mn), vr(p+14), vr(p+15))
    A('v_max_f32', vr(mx), vr(mx), vr(mx+1))
    A('v_min_f32', vr(mn), vr(mn), vr(mn+1))
    A('v_mul_f32', vr(mx), 's61', vr(mx))
    A('v_mul_f32', vr(mn), 's60', vr(mn))
    for sgn in range(2):
        c = 's60' if sgn == 0 else 's61'
        b = mx if sgn == 0 else mn
        d = e if sgn == 0 else p
        for k in range(16):
            A('v_fma_f32', vr(d+k), vr(p+k), c, vr(b))
        for k in range(16):
            A('v_exp_f32', vr(d+k), vr(d+k))
        s8 = ph + 8*sgn
        for k in range(4):
            A('v_pk_add_f32', vr(s8+2*k, 2), vr(d+4*k, 2), vr(d+4*k+2, 2))
        A('v_pk_add_f32', vr(s8, 2), vr(s8, 2), vr(s8+2, 2))
        A('v_pk_add_f32', vr(s8+4, 2), vr(s8+4, 2), vr(s8+6, 2))
        A('v_pk_add_f32', vr(s8, 2), vr(s8, 2), vr(s8+4, 2))
        A('v_add_f32', vr(sm), vr(s8), vr(s8+1))
        A('v_rcp_f32', vr(sm), vr(sm))
        for k in range(8):
            A('v_pk_mul_f32', vr(d+2*k, 2), vr(d+2*k, 2), vr(sm, 2), mods='op_sel_hi:[1,0]')
        for k in range(8):
            A('v_cvt_pk_bf16_f32', vr(s8+k), vr(d+2*k), vr(d+2*k+1))

def gen_b(A, opt):
    mimic = opt.get('mimic_b', False)
    sW = 4
    sU, sWQ, sWS, sPH, sGW = 40, 44, 48, 52, 56
    sRB, sHQ, sC, sT0, sT1, sT2, sMx, sMw, sXb, sWb, sHH, sC0 = 5, 6, 7, 62, 63, 64, 65, 98, 99, 100, 101, 3
    vL = 1
    vT0, vT1, vT2, vT3 = 2, 3, 4, 5
    vXo0, vXo1, vWo = 6, 7, 8
    vXa = 10
    vWa, vWq = 14, 15
    accK, accV = 16, 32
    vF = 48
    vPH = 80
    vGW, vGX = 88, 96
    A('s_and_b32', sr(sT0), 's2', 7)
    A('s_lshr_b32', sr(sT1), 's2', 3)
    A('s_lshr_b32', sr(sRB), sr(sT0), 1)
    A('s_lshl_b32', sr(sRB), sr(sRB), 2)
    A('s_and_b32', sr(sT2), sr(sT1), 3)
    A('s_add_u32', sr(sRB), sr(sRB), sr(sT2))
    A('s_and_b32', sr(sT0), sr(sT0), 1)
    A('s_lshr_b32', sr(sT1), sr(sT1), 2)
    A('s_lshl_b32', sr(sHQ), sr(sT0), 2)
    A('s_add_u32', sr(sHQ), sr(sHQ), sr(sT1))
    A('s_add_u32', sr(sC), sr(sT1), sr(sT2))
    A('s_lshl_b32', sr(sC), sr(sC), 1)
    A('s_add_u32', sr(sC), sr(sC), sr(sT0))
    A('s_and_b32', sr(sC), sr(sC), 7)
    A('s_mov_b32', sr(sC0), sr(sC))
    A('s_lshr_b32', sr(sHH), sr(sW), 2)
    A('v_lshrrev_b32', vr(vT0), 3, vr(vL))
    A('v_and_b32', vr(vT1), 7, vr(vL))
    A('v_lshrrev_b32', vr(vT2), 4, vr(vL))
    A('v_xor_b32', vr(vXo0), vr(vT1), vr(vT2))
    A('v_lshlrev_b32', vr(vXo0), 4, vr(vXo0))
    A('v_lshl_add_u32', vr(vXo0), vr(vT0), 10, vr(vXo0))
    A('v_xor_b32', vr(vXo1), 64, vr(vXo0))
    A('v_add_u32', vr(vXo1), 8192, vr(vXo1))
    A('v_and_b32', vr(vT2), 1, vr(vT2))
    A('v_lshlrev_b32', vr(vT2), 2, vr(vT2))
    A('v_xor_b32', vr(vT1), vr(vT1), vr(vT2))
    A('v_lshlrev_b32', vr(vT1), 4, vr(vT1))
    A('v_mul_u32_u24', vr(vWo), 3072, vr(vT0))
    A('v_add_u32', vr(vWo), vr(vWo), vr(vT1))
    A('s_lshl_b32', sr(sXb), sr(sRB), 3)
    A('s_add_u32', sr(sXb), sr(sXb), sr(sW))
    A('s_lshl_b32', sr(sXb), sr(sXb), 14)
    A('s_mul_i32', sr(sWb), sr(sW), 8*3072)
    A('s_lshl_b32', sr(sT0), sr(sHQ), 7)
    A('s_add_u32', sr(sWb), sr(sWb), sr(sT0))
    A('s_lshl_b32', sr(sMx), sr(sW), 11)
    A('s_lshl_b32', sr(sMw), sr(sW), 10)
    A('s_waitcnt', 'lgkmcnt(0)')
    srd(A, sU, 8, 2048*1024)
    srd(A, sWQ, 24, 512*3072)
    def stage(i):
        sl = (i & 3) * 16384
        A('s_lshl_b32', sr(sT0), sr(sC), 7)
        A('s_add_u32', sr(sT0), sr(sT0), sr(sXb))
        A('s_add_u32', 'm0', sr(sMx), sl)
        A('s_mul_i32', sr(sT1), sr(sC), 64*3072)
        A('buffer_load_dwordx4', vr(vXo0), sr(sU, 4), sr(sT0), mods='offen lds')
        A('s_add_u32', 'm0', sr(sMx), sl + 1024)
        A('s_add_u32', sr(sT1), sr(sT1), sr(sWb))
        A('buffer_load_dwordx4', vr(vXo1), sr(sU, 4), sr(sT0), mods='offen lds')
        A('s_add_u32', 'm0', sr(sMw), 65536 + sl - 1024)
        A('s_add_u32', sr(sC), sr(sC), 1)
        A('buffer_load_dwordx4', vr(vWo), sr(sWQ, 4), sr(sT1), mods='offen offset:1024 lds')
        A('s_add_u32', 'm0', sr(sMw), 65536 + sl + 8192 - 2048)
        A('s_and_b32', sr(sC), sr(sC), 7)
        A('buffer_load_dwordx4', vr(vWo), sr(sWQ, 4), sr(sT1), mods='offen offset:2048 lds')
        A.mark(f'st{i}')
    WQ_AT = [0, 8192, 65536, 65536 + 8192, 16384, 16384 + 8192, 65536 + 16384, 65536 + 16384 + 8192]
    def wq_chunk(j):
        A('s_mul_i32', sr(sT1), sr(sC), 64*3072)
        A('s_add_u32', 'm0', sr(sMw), WQ_AT[j])
        A('s_add_u32', sr(sT1), sr(sT1), sr(sWb))
        A('s_add_u32', sr(sC), sr(sC), 1)
        A('buffer_load_dwordx4', vr(vWo), sr(sWQ, 4), sr(sT1), mods='offen lds')
        A('s_and_b32', sr(sC), sr(sC), 7)
    stage(0)
    stamp(A, opt, 0)
    srd(A, sPH, 26, 32*512)
    srd(A, sGW, 30, 1024)
    srd(A, sWS, 36, WS_SZ)
    A('v_lshlrev_b32', vr(vT0), 2, vr(vL))
    A('s_lshl_b32', sr(sT0), sr(sHQ), 3)
    A('s_add_u32', sr(sT0), sr(sT0), sr(sW))
    A('s_lshl_b32', sr(sT0), sr(sT0), 8)
    A('s_lshl_b32', sr(sT1), sr(sW), 8)
    A('s_add_u32', 'm0', sr(sT1), E_)
    A('s_lshl_b32', sr(sT1), sr(sC0), 7)
    A('buffer_load_dword', vr(vT0), sr(sPH, 4), sr(sT0), mods='offen lds')
    A('v_lshrrev_b32', vr(vT1), 5, vr(vL))
    A('v_lshlrev_b32', vr(vT2), 4, vr(vT1))
    A('s_lshl_b32', sr(sT2), sr(sHH), 6)
    A('s_add_u32', sr(sT1), sr(sT1), sr(sT2))
    A('buffer_load_dwordx4', vr(vGW, 4), vr(vT2), sr(sGW, 4), sr(sT1), mods='offen')
    A('buffer_load_dwordx4', vr(vGW+4, 4), vr(vT2), sr(sGW, 4), sr(sT1), mods='offen offset:32')
    A.mark('st0')
    stage(1)
    stage(2)
    A('v_and_b32', vr(vT0), 31, vr(vL))
    A('v_bfe_u32', vr(vT2), vr(vL), 1, 3)
    A('v_xor_b32', vr(vT2), vr(vT2), vr(vT1))
    A('v_lshlrev_b32', vr(vT2), 4, vr(vT2))
    A('v_lshl_add_u32', vr(vXa), vr(vT0), 7, vr(vT2))
    A('s_and_b32', sr(sT0), sr(sW), 3)
    A('s_lshl_b32', sr(sT2), sr(sT0), 12)
    A('v_add_u32', vr(vXa), sr(sT2), vr(vXa))
    for t in range(1, 4):
        A('v_xor_b32', vr(vXa+t), 32*t, vr(vXa))
    vR, vC = 104, 105
    A('v_bfe_u32', vr(vR), vr(vL), 2, 2)
    A('v_and_b32', vr(vC), 3, vr(vL))
    A('v_lshlrev_b32', vr(vC), 3, vr(vC))
    A('v_bfe_u32', vr(vT2), vr(vL), 4, 1)
    A('v_lshl_add_u32', vr(vC), vr(vT2), 5, vr(vC))
    A('v_bfe_u32', vr(vT3), vr(vL), 3, 1)
    A('v_lshl_add_u32', vr(vC), vr(vT3), 6, vr(vC))
    A('s_lshl_b32', sr(sT2), sr(sHH), 6)
    A('v_xor_b32', vr(vWq), sr(sT2), vr(vC))
    A('v_lshl_add_u32', vr(vT3), vr(vT1), 3, vr(vR))
    A('v_lshl_add_u32', vr(vWq), vr(vT3), 7, vr(vWq))
    A('v_add_u32', vr(vWa), 65536, vr(vWq))
    vPa, vGa = 106, 107
    A('v_lshl_add_u32', vr(vT3), vr(vT1), 2, vr(vR))
    A('v_lshlrev_b32', vr(vPa), 5, vr(vT3))
    A('v_lshl_add_u32', vr(vPa), vr(vT2), 4, vr(vPa))
    A('v_bfe_u32', vr(vT3), vr(vL), 1, 1)
    A('v_lshl_add_u32', vr(vPa), vr(vT3), 3, vr(vPa))
    A('s_lshl_b32', sr(sT2), sr(sHH), 10)
    A('s_add_u32', sr(sT2), sr(sT2), E_)
    A('v_add_u32', vr(vPa), sr(sT2), vr(vPa))
    A('s_lshl_b32', sr(sT2), sr(sHH), 6)
    A('v_xor_b32', vr(vGa), sr(sT2), vr(vXa))
    A('v_xor_b32', vr(vGa+1), 32, vr(vGa))
    A('s_mov_b32', 's60', f2u(1.4426950408889634))
    A('s_mov_b32', 's61', f2u(-1.4426950408889634))
    vVw, vEw = 110, 111
    A('s_lshl_b32', sr(sT2), sr(sT0), 10)
    A('v_lshl_add_u32', vr(vT3), vr(vT0), 5, sr(sT2))
    A('v_lshl_add_u32', vr(vVw), vr(vT1), 4, vr(vT3))
    A('s_lshl_b32', sr(sT2), sr(sHH), 13)
    A('s_add_u32', sr(sT2), sr(sT2), 98304)
    A('v_add_u32', vr(vVw), sr(sT2), vr(vVw))
    A('v_lshl_add_u32', vr(vEw), vr(vT1), 13, vr(vT3))
    A('s_lshl_b32', sr(sT2), sr(sHH), 14)
    A('s_add_u32', sr(sT2), sr(sT2), E_)
    A('v_add_u32', vr(vEw), sr(sT2), vr(vEw))
    for i in range(8):
        sl = (i & 3) * 16384
        A.waitmark(f'st{i}')
        A('s_barrier')
        if i in (0, 1, 4, 7): stamp(A, opt, {0: 1, 1: 2, 4: 3, 7: 4}[i])
        if i + 3 < 8: stage(i + 3)
        elif i == 5:
            for j in range(4): wq_chunk(j)
        elif i == 6:
            for j in range(4, 8): wq_chunk(j)
        def R(t):
            A('ds_read_b128', ar(16*i + 4*t, 4), vr(vXa+t), mods=f'offset:{sl}')
            for part in range(2):
                for j in range(2):
                    A('ds_read_b64_tr_b16', vr(vF + 8*t + 4*part + 2*j, 2), vr(vWa), mods=f'offset:{sl + part*8192 + (16*t + 4*j)*128}')
        def M(t):
            first = (i == 0 and t == 0)
            A('v_mfma_f32_32x32x16_bf16', vr(accK, 16), vr(vF + 8*t, 4), ar(16*i + 4*t, 4), '0' if first else vr(accK, 16))
            A('v_mfma_f32_32x32x16_bf16', vr(accV, 16), vr(vF + 8*t + 4, 4), ar(16*i + 4*t, 4), '0' if first else vr(accV, 16))
        R(0); R(1); R(2); M(0); R(3); M(1); M(2); M(3)
        if i == 0:
            A('ds_read_b128', vr(vGX, 4), vr(vGa))
            A('ds_read_b128', vr(vGX+4, 4), vr(vGa+1))
            for h in range(2):
                for j in range(2):
                    A('ds_read_b64_tr_b16', vr(vPH + 4*h + 2*j, 2), vr(vPa), mods=f'offset:{h*512 + j*256}')
            A('v_bfe_u32', vr(vT3), vr(vL), 2, 1)
            A('v_cmp_eq_u32', 'vcc', 0, vr(vT3))
            for k in range(4):
                A('v_cndmask_b32', vr(vPH+k), 0, vr(vPH+k), 'vcc')
                A('v_cndmask_b32', vr(vPH+4+k), vr(vPH+4+k), 0, 'vcc', mods='')
            A('s_waitcnt', 'lgkmcnt(0)')
        if i == 1:
            g, t0 = 112, 114
            A('v_mov_b32', vr(g), 0)
            A('s_mov_b32', sr(sT2), '0x3f803f80')
            for k in range(8):
                a, b = t0 + 4*(k & 1), t0 + 4*(k & 1) + 2
                A('v_lshlrev_b32', vr(a), 16, vr(vGX+k))
                A('v_and_b32', vr(a+1), '0xffff0000', vr(vGX+k))
                A('v_lshlrev_b32', vr(b), 16, vr(vGW+k))
                A('v_and_b32', vr(b+1), '0xffff0000', vr(vGW+k))
                A('v_mul_f32', vr(a), vr(a), vr(b))
                A('v_mul_f32', vr(a+1), vr(a+1), vr(b+1))
                A('v_cvt_pk_bf16_f32', vr(a), vr(a), vr(a+1))
                A('v_dot2_f32_bf16', vr(g), vr(a), sr(sT2), vr(g))
            A('v_mov_b32', vr(g+1), vr(g))
            A('v_permlane32_swap_b32', vr(g), vr(g+1))
            A('v_add_f32', vr(g), vr(g), vr(g+1))
            A('v_lshlrev_b32', vr(t0), 6, vr(vT0))
            A('v_lshl_or_b32', vr(t0), vr(vT1), 31, vr(t0))
            A('s_lshl_b32', sr(sT0), sr(sRB), 2)
            A('s_and_b32', sr(sT1), sr(sW), 3)
            A('s_add_u32', sr(sT0), sr(sT0), sr(sT1))
            A('s_lshl_b32', sr(sT0), sr(sT0), 11)
            A('s_lshl_b32', sr(sT1), sr(sHQ), 1)
            A('s_add_u32', sr(sT1), sr(sT1), sr(sHH))
            A('s_lshl_b32', sr(sT1), sr(sT1), 2)
            A('s_add_u32', sr(sT0), sr(sT0), sr(sT1))
            A('s_add_u32', sr(sT0), sr(sT0), hex(WS_GP))
            A('buffer_store_dword', vr(g), vr(t0), sr(sWS, 4), sr(sT0), mods='offen' + opt.get('wt1', ''))
    stamp(A, opt, 5)
    kp, pp, ph, tmp = 48, 56, 88, 104+8
    tmp = 16
    vp = 72
    for k in range(8):
        A('v_cvt_pk_bf16_f32', vr(kp+k), vr(accK+2*k), vr(accK+2*k+1))
    A('v_mfma_f32_32x32x16_bf16', vr(pp, 16), vr(vPH, 4), vr(kp, 4), '0')
    A('v_mfma_f32_32x32x16_bf16', vr(pp, 16), vr(vPH+4, 4), vr(kp+4, 4), vr(pp, 16))
    for k in range(8):
        A('v_cvt_pk_bf16_f32', vr(vp+k), vr(accV+2*k), vr(accV+2*k+1))
    A('ds_write_b128', vr(vVw), vr(vp, 4))
    A('ds_write_b128', vr(vVw), vr(vp+4, 4), mods='offset:4096')
    softmax_pm(A, pp, ph, tmp, mimic)
    for fh in range(2):
        for j in range(2):
            A('ds_write_b128', vr(vEw), vr(ph + 8*fh + 4*j, 4), mods=f'offset:{fh*4096 + j*16}')
    vPr, vVr, vKo, vZo = 124, 125, 122, 123
    A('s_lshl_b32', sr(sT0), sr(sW), 12)
    A('s_add_u32', sr(sT0), sr(sT0), E_)
    A('v_lshl_add_u32', vr(vPr), vr(vL), 3, sr(sT0))
    A('s_lshr_b32', sr(sT0), sr(sW), 1)
    A('s_lshl_b32', sr(sT0), sr(sT0), 12)
    A('s_add_u32', sr(sT0), sr(sT0), 98304)
    A('v_lshl_add_u32', vr(vVr), vr(vL), 3, sr(sT0))
    A('v_lshlrev_b32', vr(vKo), 4, vr(vL))
    A('v_and_b32', vr(vT3), 15, vr(vL))
    A('v_cmp_eq_u32', 'vcc', 0, vr(vT3))
    A('v_mov_b32', vr(vZo), '0x80000000')
    A('v_cndmask_b32', vr(vZo), vr(vZo), vr(vL), 'vcc')
    ones = 44
    for k in range(4): A('v_mov_b32', vr(ones+k), '0x3f803f80')
    sKVh, sKV = 38, 39
    A('s_mul_i32', sr(sKVh), sr(sHQ), 16*KVB)
    A('s_add_u32', sr(sKVh), sr(sKVh), hex(WS_KV))
    A('s_mul_i32', sr(sKV), sr(sRB), KVB)
    A('s_add_u32', sr(sKV), sr(sKV), sr(sKVh))
    A('s_lshl_b32', sr(sT0), sr(sW), 6)
    A('s_add_u32', sr(sT0), sr(sT0), 8192)
    A('s_add_u32', sr(sT1), sr(sKV), sr(sT0))
    A('s_add_u32', sr(sT2), sr(sKV), sr(sMw))
    A('s_waitcnt', 'lgkmcnt(0)')
    A('s_barrier')
    stamp(A, opt, 6)
    fa, fb, aKV, aZ = 48, 64, 16, 20
    for kk in range(4):
        for j in range(2):
            A('ds_read_b64_tr_b16', vr(fa + 4*kk + 2*j, 2), vr(vPr), mods=f'offset:{kk*1024 + j*512}')
        for j in range(2):
            A('ds_read_b64_tr_b16', vr(fb + 4*kk + 2*j, 2), vr(vVr), mods=f'offset:{kk*1024 + j*512}')
    for kk in range(4):
        A('v_mfma_f32_16x16x32_bf16', vr(aKV, 4), vr(fa + 4*kk, 4), vr(fb + 4*kk, 4), '0' if kk == 0 else vr(aKV, 4))
        A('v_mfma_f32_16x16x32_bf16', vr(aZ, 4), vr(fa + 4*kk, 4), vr(ones, 4), '0' if kk == 0 else vr(aZ, 4))
    T_, TZ, TZERO = 114688, 114688 + 4096, 114688 + 4096 + 256
    A('v_mov_b32', vr(vT3), 0)
    A('v_lshlrev_b32', vr(vT2), 2, vr(vL))
    A('v_add_u32', vr(vT2), TZERO, vr(vT2))
    A('ds_write_b32', vr(vT2), vr(vT3))
    A('buffer_store_dwordx4', vr(aKV, 4), vr(vKo), sr(sWS, 4), sr(sT2), mods='offen sc1')
    A('buffer_store_dwordx4', vr(aZ, 4), vr(vZo), sr(sWS, 4), sr(sT1), mods='offen sc1')
    A('s_waitcnt', 'vmcnt(0)')
    A('s_barrier')
    stamp(A, opt, 7)
    A('s_lshl_b32', sr(sC), sr(sHQ), 5)
    A('v_mov_b32', vr(vT2), sr(sC))
    A('s_cmp_lg_u32', sr(sW), 0)
    A('s_cbranch_scc1', 'B_NOSIG')
    A('v_mov_b32', vr(vT3), 1)
    A('s_mov_b64', 'exec', 1)
    A('global_atomic_add', vr(vT2), vr(vT3), 's[34:35]', mods='sc1')
    A('s_mov_b64', 'exec', -1)
    A.label('B_NOSIG')
    accQ = 16
    nbuf = 6
    def RQ(n):
        i, t = n >> 2, n & 3
        base = vWa if WQ_AT[i] >= 65536 else vWq
        off = WQ_AT[i] & 65535
        f = vF + 4*(n % nbuf)
        for j in range(2):
            A('ds_read_b64_tr_b16', vr(f + 2*j, 2), vr(base), mods=f'offset:{off + (16*t + 4*j)*128}')
    for n in range(nbuf - 1): RQ(n)
    for n in range(32):
        if n + nbuf - 1 < 32: RQ(n + nbuf - 1)
        A('v_mfma_f32_32x32x16_bf16', vr(accQ, 16), vr(vF + 4*(n % nbuf), 4), ar(4*n, 4), '0' if n == 0 else vr(accQ, 16))
    stamp(A, opt, 8)
    for k in range(8):
        A('v_cvt_pk_bf16_f32', vr(kp+k), vr(accQ+2*k), vr(accQ+2*k+1))
    A('v_mfma_f32_32x32x16_bf16', vr(pp, 16), vr(vPH, 4), vr(kp, 4), '0')
    A('v_mfma_f32_32x32x16_bf16', vr(pp, 16), vr(vPH+4, 4), vr(kp+4, 4), vr(pp, 16))
    vZl, vTw, vTZw, vTa, vTZr, vOo = 104, 105, 106, 107, 108, 109
    A('v_and_b32', vr(vT3), 15, vr(vL))
    A('v_mul_u32_u24', vr(vZl), KVB, vr(vT3))
    A('v_and_b32', vr(vTZw), 48, vr(vL))
    A('v_add_u32', vr(vZl), vr(vZl), vr(vTZw))
    A('v_lshrrev_b32', vr(vTZw), 1, vr(vTZw))
    A('v_lshl_add_u32', vr(vTw), vr(vT3), 6, vr(vTZw))
    A('s_lshr_b32', sr(sT0), sr(sW), 1)
    A('s_lshl_b32', sr(sT0), sr(sT0), 10)
    A('s_and_b32', sr(sT1), sr(sW), 1)
    A('s_lshl_b32', sr(sT1), sr(sT1), 5)
    A('s_add_u32', sr(sT0), sr(sT0), sr(sT1))
    A('s_add_u32', sr(sT0), sr(sT0), T_)
    A('v_add_u32', vr(vTw), sr(sT0), vr(vTw))
    A('s_lshl_b32', sr(sT0), sr(sW), 5)
    A('s_add_u32', sr(sT0), sr(sT0), TZ)
    A('v_add_u32', vr(vTZw), sr(sT0), vr(vTZw))
    A('v_bfe_u32', vr(vT3), vr(vL), 3, 1)
    A('v_lshlrev_b32', vr(vTa), 9, vr(vT3))
    A('v_bfe_u32', vr(vT3), vr(vL), 4, 1)
    A('v_lshl_add_u32', vr(vTa), vr(vT3), 8, vr(vTa))
    A('v_and_b32', vr(vT3), 3, vr(vL))
    A('v_lshl_add_u32', vr(vTa), vr(vT3), 6, vr(vTa))
    A('v_lshl_add_u32', vr(vTa), vr(vT1), 10, vr(vTa))
    A('s_lshl_b32', sr(sT0), sr(sHH), 11)
    A('s_add_u32', sr(sT0), sr(sT0), T_)
    A('v_add_u32', vr(vTa), sr(sT0), vr(vTa))
    A('v_bfe_u32', vr(vT3), vr(vL), 2, 1)
    A('v_cmp_eq_u32', 'vcc', vr(vT3), vr(vT1))
    A('v_mov_b32', vr(vT3), TZERO)
    A('v_cndmask_b32', vr(vTa), vr(vT3), vr(vTa), 'vcc')
    A('s_lshl_b32', sr(sT0), sr(sHH), 7)
    A('s_add_u32', sr(sT0), sr(sT0), TZ)
    A('v_lshl_add_u32', vr(vTZr), vr(vT1), 6, sr(sT0))
    A('v_lshlrev_b32', vr(vOo), 10, vr(vT0))
    A('v_lshl_add_u32', vr(vOo), vr(vT1), 5, vr(vOo))
    softmax_pm(A, pp, ph, tmp, mimic)
    stamp(A, opt, 9)
    A('s_cmp_lg_u32', sr(sW), 0)
    A('s_cbranch_scc1', 'B_NOPOLL')
    A('s_waitcnt', 'vmcnt(0)')
    A.label('B_POLL')
    A('global_load_dword', vr(vT3), vr(vT2), 's[34:35]', mods='sc1')
    A('s_waitcnt', 'vmcnt(0)')
    A('v_readfirstlane_b32', sr(sT0), vr(vT3))
    A('s_cmp_lt_u32', sr(sT0), 16)
    A('s_cbranch_scc1', 'B_POLL')
    A.label('B_NOPOLL')
    A('s_barrier')
    stamp(A, opt, 10)
    L0, zz = 16, 84
    A('s_lshl_b32', sr(sT0), sr(sW), 6)
    A('s_add_u32', sr(sT0), sr(sT0), sr(sKVh))
    A('s_add_u32', sr(sT1), sr(sT0), 8192)
    A('s_add_u32', sr(sT0), sr(sKVh), sr(sMw))
    A('buffer_load_dwordx4', vr(zz, 4), vr(vZl), sr(sWS, 4), sr(sT1), mods='offen sc1')
    for r in range(16):
        A('buffer_load_dwordx4', vr(L0 + 4*r, 4), vr(vKo), sr(sWS, 4), sr(sT0), mods='offen sc1')
        if r < 15: A('s_add_u32', sr(sT0), sr(sT0), KVB)
    for sh in (8, 4, 2, 1):
        for k in range(4):
            A('v_add_f32_dpp', vr(zz+k), vr(zz+k), vr(zz+k), mods=f'row_ror:{sh} row_mask:0xf bank_mask:0xf')
    A('v_cvt_pk_bf16_f32', vr(zz), vr(zz), vr(zz+1))
    A('v_cvt_pk_bf16_f32', vr(zz+1), vr(zz+2), vr(zz+3))
    A('s_mov_b32', 'exec_lo', '0x00010001')
    A('s_mov_b32', 'exec_hi', '0x00010001')
    A('ds_write_b64', vr(vTZw), vr(zz, 2))
    A('s_mov_b64', 'exec', -1)
    for r in range(2, 16):
        d = L0 + 4*(r & 1)
        A('v_pk_add_f32', vr(d, 2), vr(d, 2), vr(L0 + 4*r, 2))
        A('v_pk_add_f32', vr(d+2, 2), vr(d+2, 2), vr(L0 + 4*r + 2, 2))
    A('v_pk_add_f32', vr(L0, 2), vr(L0, 2), vr(L0+4, 2))
    A('v_pk_add_f32', vr(L0+2, 2), vr(L0+2, 2), vr(L0+6, 2))
    A('v_cvt_pk_bf16_f32', vr(L0), vr(L0), vr(L0+1))
    A('v_cvt_pk_bf16_f32', vr(L0+1), vr(L0+2), vr(L0+3))
    A('ds_write_b64', vr(vTw), vr(L0, 2))
    A('s_lshl_b32', sr(sT0), sr(sRB), 2)
    A('s_and_b32', sr(sT1), sr(sW), 3)
    A('s_add_u32', sr(sT0), sr(sT0), sr(sT1))
    A('s_lshl_b32', sr(sT0), sr(sT0), 15)
    A('s_lshl_b32', sr(sT1), sr(sHQ), 7)
    A('s_add_u32', sr(sT0), sr(sT0), sr(sT1))
    A('s_lshl_b32', sr(sT1), sr(sHH), 6)
    A('s_add_u32', sr(sT0), sr(sT0), sr(sT1))
    A('s_add_u32', sr(sT0), sr(sT0), hex(WS_O))
    A('s_waitcnt', 'lgkmcnt(0)')
    A('s_barrier')
    stamp(A, opt, 11)
    tA, tZ, num, den = 32, 48, 16, 64
    for j in range(4): A('ds_read_b128', vr(tA + 4*j, 4), vr(vTa), mods=f'offset:{16*j}')
    for j in range(4): A('ds_read_b128', vr(tZ + 4*j, 4), vr(vTZr), mods=f'offset:{16*j}')
    for j in range(4):
        A('v_mfma_f32_32x32x16_bf16', vr(num, 16), vr(tA + 4*j, 4), vr(ph + 4*j, 4), '0' if j == 0 else vr(num, 16))
    for k in range(16):
        d = den + (k & 1)
        A('v_dot2_f32_bf16', vr(d), vr(ph + k), vr(tZ + k), '0' if k < 2 else vr(d))
    A('v_add_f32', vr(den), vr(den), vr(den+1))
    if mimic:
        A('v_cvt_pk_bf16_f32', vr(den), vr(den), vr(den))
        A('v_and_b32', vr(den), '0xffff0000', vr(den))
    A('v_add_f32', vr(den), f2u(1e-6), vr(den))
    if mimic:
        A('v_cvt_pk_bf16_f32', vr(den), vr(den), vr(den))
        A('v_and_b32', vr(den), '0xffff0000', vr(den))
    A('v_rcp_f32', vr(den), vr(den))
    o = 68
    for k in range(8):
        if mimic:
            A('v_cvt_pk_bf16_f32', vr(o+k), vr(num+2*k), vr(num+2*k+1))
            A('v_lshlrev_b32', vr(num+2*k), 16, vr(o+k))
            A('v_and_b32', vr(num+2*k+1), '0xffff0000', vr(o+k))
        A('v_pk_mul_f32', vr(num+2*k, 2), vr(num+2*k, 2), vr(den, 2), mods='op_sel_hi:[1,0]')
        A('v_cvt_pk_bf16_f32', vr(o+k), vr(num+2*k), vr(num+2*k+1))
        if k == 3: A('buffer_store_dwordx4', vr(o, 4), vr(vOo), sr(sWS, 4), sr(sT0), mods='offen' + opt.get('wt1', ''))
        if k == 7: A('buffer_store_dwordx4', vr(o+4, 4), vr(vOo), sr(sWS, 4), sr(sT0), mods='offen offset:16' + opt.get('wt1', ''))
    if opt.get('stamps'):
        stamp(A, opt, 12)
        A('s_waitcnt', 'vmcnt(0)')
        stamp(A, opt, 13)
        stamps_flush(A, opt, 14, sWS, sW, 0)
    spin_end(A, opt, 'spin1', 'SPB')
    A('s_endpgm')
```

```python
from common import *
import gen_b
def gen_l1(opt):
    A = Asm()
    if opt.get('rt'): stamp(A, opt, 15)
    spin_begin(A, opt, 'spin1')
    A('s_cmp_ge_u32', 's2', 256)
    A('s_cbranch_scc1', 'L1_END')
    A('s_load_dwordx16', 's[8:23]', 's[0:1]', 0)
    A('s_load_dwordx8', 's[24:31]', 's[0:1]', 64)
    A('s_load_dwordx4', 's[32:35]', 's[0:1]', 96)
    A('s_load_dwordx2', 's[36:37]', 's[0:1]', 112)
    code_prefetch(A, opt, 'L1', 512, 2, 126, 2)
    A('v_lshrrev_b32', 'v2', 6, 'v0')
    A('v_and_b32', 'v1', 63, 'v0')
    A('v_readfirstlane_b32', 's4', 'v2')
    A('s_cmp_ge_u32', 's2', 128)
    A('s_cbranch_scc1', 'A_ROLE')
    gen_b.gen_b(A, opt)
    A.label('A_ROLE')
    A.fence()
    if not opt.get('noa'):
        import gen_a
        gen_a.gen_a(A, opt)
    spin_end(A, opt, 'spin1', 'SPA')
    A.label('L1_END')
    A('s_endpgm')
    return A, 163840
```

```python
from common import *

LDS_L2 = 139264
def gen_l2(opt):
    A = Asm()
    mimic = opt.get('mimic_l2', False)
    sWO, sWS, sOUT = 12, 16, 20
    sW, sRT, sCT, sC, sT0, sT1, sT2, sM = 24, 25, 26, 27, 28, 29, 30, 31
    sOb, sWb = 32, 33
    if opt.get('rt'): stamp(A, opt, 15)
    spin_begin(A, opt, 'spin2')
    A('s_cmp_ge_u32', 's2', 256)
    A('s_cbranch_scc1', 'L2_END')
    A('s_load_dwordx2', 's[4:5]', 's[0:1]', 80)
    A('s_load_dwordx2', 's[6:7]', 's[0:1]', 96)
    A('s_load_dwordx2', 's[8:9]', 's[0:1]', 112)
    code_prefetch(A, opt, 'L2', 256, 2, 95, 1)
    vL, vT0, vT1, vT2 = 1, 2, 3, 4
    vXo0, vXo1, vWo, vAo = 5, 6, 7, 8
    A('v_and_b32', vr(vL), 63, 'v0')
    A('v_lshrrev_b32', vr(vT0), 6, 'v0')
    A('v_readfirstlane_b32', sr(sW), vr(vT0))
    A('s_and_b32', sr(sT0), 's2', 7)
    A('s_lshr_b32', sr(sT1), 's2', 3)
    A('s_lshr_b32', sr(sRT), sr(sT0), 1)
    A('s_lshl_b32', sr(sRT), sr(sRT), 3)
    A('s_and_b32', sr(sT2), sr(sT1), 7)
    A('s_add_u32', sr(sRT), sr(sRT), sr(sT2))
    A('s_and_b32', sr(sCT), sr(sT0), 1)
    A('s_lshl_b32', sr(sCT), sr(sCT), 2)
    A('s_lshr_b32', sr(sT1), sr(sT1), 3)
    A('s_add_u32', sr(sCT), sr(sCT), sr(sT1))
    A('s_lshl_b32', sr(sC), sr(sT1), 1)
    A('s_add_u32', sr(sC), sr(sC), sr(sT2))
    A('s_and_b32', sr(sC), sr(sC), 7)
    A('v_lshrrev_b32', vr(vT0), 3, vr(vL))
    A('v_and_b32', vr(vT1), 7, vr(vL))
    A('v_lshrrev_b32', vr(vT2), 4, vr(vL))
    A('v_xor_b32', vr(vXo0), vr(vT1), vr(vT2))
    A('v_lshlrev_b32', vr(vXo0), 4, vr(vXo0))
    A('v_lshl_add_u32', vr(vXo0), vr(vT0), 10, vr(vXo0))
    A('v_xor_b32', vr(vXo1), 64, vr(vXo0))
    A('v_add_u32', vr(vXo1), 8192, vr(vXo1))
    A('v_and_b32', vr(vT2), 1, vr(vT2))
    A('v_lshlrev_b32', vr(vT2), 2, vr(vT2))
    A('v_xor_b32', vr(vT1), vr(vT1), vr(vT2))
    A('v_lshlrev_b32', vr(vT1), 4, vr(vT1))
    A('v_lshl_add_u32', vr(vWo), vr(vT0), 10, vr(vT1))
    A('v_lshl_add_u32', vr(vAo), vr(vT0), 12, vr(vT1))
    vG = 9
    A('v_and_b32', vr(vT0), 31, vr(vL))
    A('v_lshrrev_b32', vr(vT1), 5, vr(vL))
    A('v_lshlrev_b32', vr(vG), 6, vr(vT0))
    A('v_lshl_add_u32', vr(vG), vr(vT1), 5, vr(vG))
    A('s_and_b32', sr(sT0), sr(sW), 1)
    A('s_lshl_b32', sr(sT1), sr(sRT), 1)
    A('s_add_u32', sr(sT1), sr(sT1), sr(sT0))
    A('s_lshl_b32', sr(sT2), sr(sT1), 11)
    A('s_add_u32', sr(sT2), sr(sT2), hex(WS_GP))
    A('s_waitcnt', 'lgkmcnt(0)')
    srd(A, sWS, 8, WS_SZ)
    srd(A, sWO, 4, 512*1024)
    srd(A, sOUT, 6, 2048*1024)
    stamp(A, opt, 0)
    vGP = 12
    A('buffer_load_dwordx4', vr(vGP, 4), vr(vG), sr(sWS, 4), sr(sT2), mods='offen')
    A('buffer_load_dwordx4', vr(vGP+4, 4), vr(vG), sr(sWS, 4), sr(sT2), mods='offen offset:16')
    A('s_lshl_b32', sr(sT0), sr(sCT), 2)
    A('s_add_u32', sr(sT0), sr(sT0), sr(sW))
    A('s_lshl_b32', sr(sT0), sr(sT0), 16)
    A('s_lshl_b32', sr(sT2), sr(sRT), 7)
    A('s_add_u32', sr(sT0), sr(sT0), sr(sT2))
    A('s_lshl_b32', sr(sM), sr(sW), 11)
    A('s_add_u32', 'm0', sr(sM), 131072)
    A('buffer_load_dwordx4', vr(vAo), sr(sWS, 4), sr(sT0), mods='offen lds')
    A('s_add_u32', 'm0', sr(sM), 131072 + 1024)
    A('s_add_u32', sr(sT0), sr(sT0), 8*4096)
    A('buffer_load_dwordx4', vr(vAo), sr(sWS, 4), sr(sT0), mods='offen lds')
    A('s_lshl_b32', sr(sOb), sr(sRT), 2)
    A('s_add_u32', sr(sOb), sr(sOb), sr(sW))
    A('s_lshl_b32', sr(sOb), sr(sOb), 14)
    A('s_add_u32', sr(sOb), sr(sOb), hex(WS_O))
    A('s_lshl_b32', sr(sWb), sr(sW), 14)
    A('s_lshl_b32', sr(sT2), sr(sCT), 7)
    A('s_add_u32', sr(sWb), sr(sWb), sr(sT2))
    for i in range(8):
        A('s_lshl_b32', sr(sT0), sr(sC), 7)
        A('s_add_u32', sr(sT0), sr(sT0), sr(sOb))
        A('s_add_u32', 'm0', sr(sM), i*8192)
        A('s_lshl_b32', sr(sT2), sr(sC), 16)
        A('buffer_load_dwordx4', vr(vXo0), sr(sWS, 4), sr(sT0), mods='offen lds')
        A('s_add_u32', 'm0', sr(sM), i*8192 + 1024)
        A('s_add_u32', sr(sT2), sr(sT2), sr(sWb))
        A('buffer_load_dwordx4', vr(vXo1), sr(sWS, 4), sr(sT0), mods='offen lds')
        A('s_add_u32', 'm0', sr(sM), 65536 + i*8192)
        A('s_add_u32', sr(sC), sr(sC), 1)
        A('buffer_load_dwordx4', vr(vWo), sr(sWO, 4), sr(sT2), mods='offen lds')
        A('s_add_u32', 'm0', sr(sM), 65536 + i*8192 + 1024)
        A('s_add_u32', sr(sT2), sr(sT2), 8192)
        A('buffer_load_dwordx4', vr(vWo), sr(sWO, 4), sr(sT2), mods='offen lds')
        A('s_and_b32', sr(sC), sr(sC), 7)
    vB = 20
    vA_, vAT = 24, 25
    A('v_and_b32', vr(vT0), 31, vr(vL))
    A('v_lshrrev_b32', vr(vT1), 5, vr(vL))
    A('v_bfe_u32', vr(vT2), vr(vL), 1, 3)
    A('v_xor_b32', vr(vT2), vr(vT2), vr(vT1))
    A('v_lshlrev_b32', vr(vT2), 4, vr(vT2))
    A('v_lshl_add_u32', vr(vB), vr(vT0), 7, vr(vT2))
    A('s_and_b32', sr(sT0), sr(sW), 1)
    A('s_lshl_b32', sr(sT2), sr(sT0), 12)
    A('v_add_u32', vr(vB), sr(sT2), vr(vB))
    for t in range(1, 4):
        A('v_xor_b32', vr(vB+t), 32*t, vr(vB))
    vR, vC = 10, 11
    A('v_bfe_u32', vr(vR), vr(vL), 2, 2)
    A('v_and_b32', vr(vC), 3, vr(vL))
    A('v_lshlrev_b32', vr(vC), 3, vr(vC))
    A('v_bfe_u32', vr(vT2), vr(vL), 4, 1)
    A('v_lshl_add_u32', vr(vC), vr(vT2), 5, vr(vC))
    A('v_bfe_u32', vr(vT2), vr(vL), 3, 1)
    A('v_lshl_add_u32', vr(vC), vr(vT2), 6, vr(vC))
    A('s_lshr_b32', sr(sT1), sr(sW), 1)
    A('s_lshl_b32', sr(sT2), sr(sT1), 6)
    A('v_xor_b32', vr(vA_), sr(sT2), vr(vC))
    A('v_lshl_add_u32', vr(vT2), vr(vT1), 3, vr(vR))
    A('v_lshl_add_u32', vr(vA_), vr(vT2), 7, vr(vA_))
    A('v_add_u32', vr(vA_), 65536, vr(vA_))
    A('s_lshl_b32', sr(sT2), sr(sT0), 6)
    A('v_xor_b32', vr(vAT), sr(sT2), vr(vC))
    A('v_lshl_add_u32', vr(vT2), vr(vT1), 2, vr(vR))
    A('v_lshl_add_u32', vr(vAT), vr(vT2), 7, vr(vAT))
    A('s_lshl_b32', sr(sT2), sr(sT1), 12)
    A('s_add_u32', sr(sT2), sr(sT2), 131072)
    A('v_add_u32', vr(vAT), sr(sT2), vr(vAT))
    vOut = 26
    A('v_lshlrev_b32', vr(vOut), 10, vr(vT0))
    A('v_lshl_add_u32', vr(vOut), vr(vT1), 4, vr(vOut))
    sOo = 34
    A('s_lshl_b32', sr(sOo), sr(sRT), 1)
    A('s_add_u32', sr(sOo), sr(sOo), sr(sT0))
    A('s_lshl_b32', sr(sOo), sr(sOo), 15)
    A('s_lshl_b32', sr(sT2), sr(sCT), 1)
    A('s_add_u32', sr(sT2), sr(sT2), sr(sT1))
    A('s_lshl_b32', sr(sT2), sr(sT2), 6)
    A('s_add_u32', sr(sOo), sr(sOo), sr(sT2))
    vg, vom = 28, 30
    A('v_add_f32', vr(vGP), vr(vGP), vr(vGP+1))
    A('v_add_f32', vr(vGP+2), vr(vGP+2), vr(vGP+3))
    A('v_add_f32', vr(vGP+4), vr(vGP+4), vr(vGP+5))
    A('v_add_f32', vr(vGP+6), vr(vGP+6), vr(vGP+7))
    A('v_add_f32', vr(vGP), vr(vGP), vr(vGP+2))
    A('v_add_f32', vr(vGP+4), vr(vGP+4), vr(vGP+6))
    A('v_add_f32', vr(vGP), vr(vGP), vr(vGP+4))
    A('v_mov_b32', vr(vGP+1), vr(vGP))
    A('v_permlane32_swap_b32', vr(vGP), vr(vGP+1))
    A('v_add_f32', vr(vGP), vr(vGP), vr(vGP+1))
    A('v_cvt_pk_bf16_f32', vr(vGP), vr(vGP), vr(vGP))
    A('v_and_b32', vr(vGP), '0xffff0000', vr(vGP))
    A('v_mul_f32', vr(vGP), f2u(-1.4426950408889634), vr(vGP))
    A('v_exp_f32', vr(vGP), vr(vGP))
    A('v_add_f32', vr(vGP), 1.0, vr(vGP))
    A('v_rcp_f32', vr(vGP), vr(vGP))
    A('v_cvt_pk_bf16_f32', vr(vg), vr(vGP), vr(vGP))
    A('v_and_b32', vr(vg), '0xffff0000', vr(vg))
    A('v_sub_f32', vr(vom), 1.0, vr(vg))
    A('v_cvt_pk_bf16_f32', vr(vom), vr(vom), vr(vom))
    A('v_and_b32', vr(vom), '0xffff0000', vr(vom))
    A('v_mov_b32', vr(vg+1), vr(vg))
    A('v_mov_b32', vr(vom+1), vr(vom))
    acc, vGA, vAf, vFa, vFb = 32, 48, 12, 64, 80
    for i in range(8):
        A.wait(vm=28 - 4*i)
        A('s_barrier')
        if i == 0: stamp(A, opt, 1)
        fa = vFa; fb = vFb
        for t in range(4):
            A('ds_read_b128', vr(fb+4*t, 4), vr(vB+t), mods=f'offset:{i*8192}')
            A('ds_read_b64_tr_b16', vr(fa+4*t, 2), vr(vA_), mods=f'offset:{i*8192 + 16*t*128}')
            A('ds_read_b64_tr_b16', vr(fa+4*t+2, 2), vr(vA_), mods=f'offset:{i*8192 + (16*t+4)*128}')
        if i == 0:
            for q in range(4):
                A('ds_read_b64_tr_b16', vr(vAf+2*q, 2), vr(vAT), mods=f'offset:{q*1024}')
        for t in range(4):
            A('v_mfma_f32_32x32x16_bf16', vr(acc, 16), vr(fa+4*t, 4), vr(fb+4*t, 4), '0' if (i == 0 and t == 0) else vr(acc, 16))
        if i == 0:
            for k in range(8):
                A('v_lshlrev_b32', vr(vGA+2*k), 16, vr(vAf+k))
                A('v_and_b32', vr(vGA+2*k+1), '0xffff0000', vr(vAf+k))
                A('v_pk_mul_f32', vr(vGA+2*k, 2), vr(vGA+2*k, 2), vr(vg, 2))
                if mimic:
                    A('v_cvt_pk_bf16_f32', vr(vAf+k), vr(vGA+2*k), vr(vGA+2*k+1))
                    A('v_lshlrev_b32', vr(vGA+2*k), 16, vr(vAf+k))
                    A('v_and_b32', vr(vGA+2*k+1), '0xffff0000', vr(vAf+k))
    stamp(A, opt, 2)
    P = 64
    for k in range(8):
        a2 = vr(acc+2*k, 2)
        if mimic:
            A('v_cvt_pk_bf16_f32', vr(P+k), vr(acc+2*k), vr(acc+2*k+1))
            A('v_lshlrev_b32', vr(acc+2*k), 16, vr(P+k))
            A('v_and_b32', vr(acc+2*k+1), '0xffff0000', vr(P+k))
            A('v_pk_mul_f32', a2, a2, vr(vom, 2))
            A('v_cvt_pk_bf16_f32', vr(P+k), vr(acc+2*k), vr(acc+2*k+1))
            A('v_lshlrev_b32', vr(acc+2*k), 16, vr(P+k))
            A('v_and_b32', vr(acc+2*k+1), '0xffff0000', vr(P+k))
            A('v_pk_add_f32', a2, a2, vr(vGA+2*k, 2))
        else:
            A('v_pk_fma_f32', a2, a2, vr(vom, 2), vr(vGA+2*k, 2))
        A('v_cvt_pk_bf16_f32', vr(P+k), vr(acc+2*k), vr(acc+2*k+1))
        if k == 3 or k == 7:
            b = P + k - 3
            A('v_permlane32_swap_b32', vr(b), vr(b+2))
            A('v_permlane32_swap_b32', vr(b+1), vr(b+3))
            A('buffer_store_dwordx4', vr(b, 4), vr(vOut), sr(sOUT, 4), sr(sOo), mods='offen' + (' offset:32' if k == 7 else '') + opt.get('wt2', ''))
    stamp(A, opt, 3)
    if opt.get('stamps'):
        A('s_waitcnt', 'vmcnt(0)')
        stamp(A, opt, 4)
    stamps_flush(A, opt, 5, sWS, sW, 0x80000)
    rt_report(A, opt, sWS, sW)
    spin_end(A, opt, 'spin2', 'SP2')
    A.label('L2_END')
    A('s_endpgm')
    return A
```

```python
import sys, importlib
from common import *
KNAME = 'gated_mix__ssm_conv_s4d__linear_kernel_hedgehog__prompt'
def header():
    ref = open(f'cdna_kernels/{KNAME}.s.ref').read().split('\n')
    out = []
    for l in ref:
        if l.startswith('; Override launch') or l.startswith('; grid=ceil') or l.startswith('; @launch'): continue
        if not l.startswith(';'): break
        out.append(l)
    return '\n'.join(out) + '\n'
def generate(opt):
    import gen_l2
    parts = opt.get('parts', ('l1', 'l2'))
    txt = header()
    body = '.amdgcn_target "amdgcn-amd-amdhsa--gfx950"\n.text\n'
    if 'l1' in parts:
        import gen_l1
        A, lds = gen_l1.gen_l1(opt)
        txt += f'; @launch kernel=mix_l1_kernel grid=(256,1,1) block=(512,1,1) lds={lds}\n'
        body += khead('mix_l1_kernel') + A.finalize() + kdesc('mix_l1_kernel', 256, 128)
        print('l1 stats', A.stats, file=sys.stderr)
    if 'l2' in parts:
        A = gen_l2.gen_l2(opt)
        txt += f'; @launch kernel=mix_l2_kernel grid=(256,1,1) block=(256,1,1) lds={gen_l2.LDS_L2}\n'
        body += khead('mix_l2_kernel') + A.finalize() + kdesc('mix_l2_kernel', 96, 96)
        print('l2 stats', A.stats, file=sys.stderr)
    return txt + body
if __name__ == '__main__':
    opt = {}
    out = f'cdna_kernels/{KNAME}.s'
    for a in sys.argv[1:]:
        if a.startswith('out='): out = a[4:]
        elif '=' in a:
            k, v = a.split('=', 1); opt[k] = eval(v)
        else: opt[a] = True
    open(out, 'w').write(generate(opt))
    print('wrote', out)
```

```python
from dsl import *
WS_AT = 0x000000
WS_O  = 0x200000
WS_KV = 0x400000
KVB   = 8704
WS_GP = 0x520000
WS_ST = 0x600000
WS_DB = 0x700000
WS_SZ = 0x1000000
LOG2E = 0x3fb8aa3b
def f2u(x):
    import struct
    return '0x%08x' % struct.unpack('<I', struct.pack('<f', x))[0]
def srd(A, d, base, size, off=None):
    A('s_mov_b32', sr(d), sr(base))
    A('s_and_b32', sr(d+1), sr(base+1), '0xffff')
    A('s_mov_b32', sr(d+2), hex(size))
    A('s_mov_b32', sr(d+3), '0x20000')
def kdesc(name, vgpr, accum, sgpr=102):
    return f'''.section .rodata,"a"
.p2align 6
.amdhsa_kernel {name}
  .amdhsa_next_free_vgpr {vgpr}
  .amdhsa_next_free_sgpr {sgpr}
  .amdhsa_accum_offset {accum}
  .amdhsa_group_segment_fixed_size 0
  .amdhsa_kernarg_size 120
  .amdhsa_user_sgpr_count 2
  .amdhsa_user_sgpr_kernarg_segment_ptr 1
  .amdhsa_system_sgpr_workgroup_id_x 1
.end_amdhsa_kernel
.text
'''
def khead(name):
    return f'''.globl {name}
.p2align 8
.type {name},@function
{name}:
'''
STB = 66
def stamp(A, opt, idx):
    if not opt.get('stamps'): return
    A('s_memrealtime' if opt.get('rt') else 's_memtime', sr(STB + 2*idx, 2))
def stamps_flush(A, opt, n, sws, swave, base):
    if not opt.get('stamps'): return
    A('s_lshl_b32', 's98', 's2', 3)
    A('s_add_u32', 's98', 's98', sr(swave))
    A('s_lshl_b32', 's98', 's98', 7)
    A('s_add_u32', 's98', 's98', hex(WS_ST + base))
    A('s_waitcnt', 'vmcnt(0) lgkmcnt(0)')
    A('v_mov_b32', 'v2', 0)
    for i in list(range(n)) + ([15] if opt.get('rt') else []):
        A('v_mov_b32', 'v0', sr(STB + 2*i))
        A('v_mov_b32', 'v1', sr(STB + 2*i + 1))
        A('buffer_store_dwordx2', 'v[0:1]', 'v2', sr(sws, 4), 's98', mods=f'offen offset:{8*i}')
        A('s_waitcnt', 'vmcnt(0)')

def rt_report(A, opt, sws, swave):
    if not opt.get('rt'): return
    A('s_load_dwordx2', 's[40:41]', 's[0:1]', 104)
    A('v_mbcnt_lo_u32_b32', 'v1', -1, 0)
    A('v_mbcnt_hi_u32_b32', 'v1', -1, 'v1')
    A('s_lshl_b32', 's42', 's2', 10)
    A('s_and_b32', 's43', sr(swave), 1)
    A('s_lshl_b32', 's43', 's43', 9)
    A('s_add_u32', 's42', 's42', 's43')
    A('s_add_u32', 's42', 's42', hex(WS_ST))
    A('v_lshlrev_b32', 'v2', 3, 'v1')
    A('buffer_load_dword', 'v3', 'v2', sr(sws, 4), 's42', mods='offen')
    A('v_and_b32', 'v4', 15, 'v1')
    A('s_waitcnt', 'vmcnt(0) lgkmcnt(0)')
    A('v_not_b32', 'v5', 'v3')
    def rep(idx, slot, inv=False):
        A('v_cmp_eq_u32', 'vcc', idx, 'v4')
        A('s_mov_b64', 'exec', 'vcc')
        A('v_mov_b32', 'v6', 4*slot)
        A('global_atomic_umax', 'v6', 'v5' if inv else 'v3', 's[40:41]')
        A('s_mov_b64', 'exec', -1)
    rep(15, 0, True)
    A('s_cmp_ge_u32', 's2', opt.get('nb', 128))
    A('s_cbranch_scc1', 'RT_A')
    for idx, slot in opt.get('rtb', [(1, 1), (5, 2), (7, 3), (10, 4), (13, 5)]): rep(idx, slot)
    A('s_branch', 'RT_X')
    A.label('RT_A')
    for idx, slot in opt.get('rta', [(1, 6), (3, 7), (4, 8), (5, 9), (8, 10)]): rep(idx, slot)
    A.label('RT_X')
    A('s_mov_b64', 'exec', 1)
    for idx, slot, inv in [(15, 11, True), (15, 12, False), (1, 13, False), (4, 14, False)]:
        A('v_mov_b32', 'v3', sr(STB + 2*idx))
        if inv: A('v_not_b32', 'v3', 'v3')
        A('v_mov_b32', 'v6', 4*slot)
        A('global_atomic_umax', 'v6', 'v3', 's[40:41]')
        A('s_waitcnt', 'vmcnt(0)')
```

```python
import sys, importlib
from common import *
KNAME = 'gated_mix__ssm_conv_s4d__linear_kernel_hedgehog__prompt'
def header():
    ref = open(f'cdna_kernels/{KNAME}.s.ref').read().split('\n')
    out = []
    for l in ref:
        if l.startswith('; Override launch') or l.startswith('; grid=ceil') or l.startswith('; @launch'): continue
        if not l.startswith(';'): break
        out.append(l)
    return '\n'.join(out) + '\n'
def generate(opt):
    import gen_l2
    parts = opt.get('parts', ('l1', 'l2'))
    txt = header()
    body = '.amdgcn_target "amdgcn-amd-amdhsa--gfx950"\n.text\n'
    if 'l1' in parts:
        import gen_l1
        A, lds = gen_l1.gen_l1(opt)
        txt += f'; @launch kernel=mix_l1_kernel grid=(256,1,1) block=(512,1,1) lds={lds}\n'
        body += khead('mix_l1_kernel') + A.finalize() + kdesc('mix_l1_kernel', 256, 128)
        print('l1 stats', A.stats, file=sys.stderr)
    if 'l2' in parts:
        A = gen_l2.gen_l2(opt)
        txt += f'; @launch kernel=mix_l2_kernel grid=(256,1,1) block=(256,1,1) lds={gen_l2.LDS_L2}\n'
        body += khead('mix_l2_kernel') + A.finalize() + kdesc('mix_l2_kernel', 96, 96)
        print('l2 stats', A.stats, file=sys.stderr)
    for k in range(opt.get('empty', 0)):
        txt += f'; @launch kernel=mix_e_kernel grid=(256,1,1) block=(64,1,1) lds=0\n'
    if opt.get('empty', 0):
        body += khead('mix_e_kernel') + 's_endpgm\n' + kdesc('mix_e_kernel', 8, 8)
    return txt + body
if __name__ == '__main__':
    opt = {}
    out = f'cdna_kernels/{KNAME}.s'
    for a in sys.argv[1:]:
        if a.startswith('out='): out = a[4:]
        elif '=' in a:
            k, v = a.split('=', 1); opt[k] = eval(v)
        else: opt[a] = True
    open(out, 'w').write(generate(opt))
    print('wrote', out)
```

```python
from dsl import *
WS_AT = 0x000000
WS_O  = 0x200000
WS_KV = 0x400000
KVB   = 8704
WS_GP = 0x520000
WS_ST = 0x600000
WS_DB = 0x700000
WS_SZ = 0x1000000
LOG2E = 0x3fb8aa3b
def f2u(x):
    import struct
    return '0x%08x' % struct.unpack('<I', struct.pack('<f', x))[0]
def srd(A, d, base, size, off=None):
    A('s_mov_b32', sr(d), sr(base))
    A('s_and_b32', sr(d+1), sr(base+1), '0xffff')
    A('s_mov_b32', sr(d+2), hex(size))
    A('s_mov_b32', sr(d+3), '0x20000')
def kdesc(name, vgpr, accum, sgpr=102):
    return f'''.section .rodata,"a"
.p2align 6
.amdhsa_kernel {name}
  .amdhsa_next_free_vgpr {vgpr}
  .amdhsa_next_free_sgpr {sgpr}
  .amdhsa_accum_offset {accum}
  .amdhsa_group_segment_fixed_size 0
  .amdhsa_kernarg_size 120
  .amdhsa_user_sgpr_count 2
  .amdhsa_user_sgpr_kernarg_segment_ptr 1
  .amdhsa_system_sgpr_workgroup_id_x 1
.end_amdhsa_kernel
.text
'''
def khead(name):
    return f'''.globl {name}
.p2align 8
.type {name},@function
{name}:
'''
STB = 66
def stamp(A, opt, idx):
    if not opt.get('stamps'): return
    A('s_memrealtime' if opt.get('rt') else 's_memtime', sr(STB + 2*idx, 2))
def stamps_flush(A, opt, n, sws, swave, base):
    if not opt.get('stamps'): return
    A('s_lshl_b32', 's98', 's2', 3)
    A('s_add_u32', 's98', 's98', sr(swave))
    A('s_lshl_b32', 's98', 's98', 7)
    A('s_add_u32', 's98', 's98', hex(WS_ST + base))
    A('s_waitcnt', 'vmcnt(0) lgkmcnt(0)')
    A('v_mov_b32', 'v2', 0)
    for i in list(range(n)) + ([15] if opt.get('rt') else []):
        A('v_mov_b32', 'v0', sr(STB + 2*i))
        A('v_mov_b32', 'v1', sr(STB + 2*i + 1))
        A('buffer_store_dwordx2', 'v[0:1]', 'v2', sr(sws, 4), 's98', mods=f'offen offset:{8*i}')
        A('s_waitcnt', 'vmcnt(0)')

def rt_report(A, opt, sws, swave):
    if not opt.get('rt'): return
    A('s_load_dwordx2', 's[40:41]', 's[0:1]', 104)
    A('v_mbcnt_lo_u32_b32', 'v1', -1, 0)
    A('v_mbcnt_hi_u32_b32', 'v1', -1, 'v1')
    A('s_lshl_b32', 's42', 's2', 10)
    A('s_and_b32', 's43', sr(swave), 1)
    A('s_lshl_b32', 's43', 's43', 9)
    A('s_add_u32', 's42', 's42', 's43')
    A('s_add_u32', 's42', 's42', hex(WS_ST))
    A('v_lshlrev_b32', 'v2', 3, 'v1')
    A('buffer_load_dword', 'v3', 'v2', sr(sws, 4), 's42', mods='offen')
    A('v_and_b32', 'v4', 15, 'v1')
    A('s_waitcnt', 'vmcnt(0) lgkmcnt(0)')
    A('v_not_b32', 'v5', 'v3')
    def rep(idx, slot, inv=False):
        A('v_cmp_eq_u32', 'vcc', idx, 'v4')
        A('s_mov_b64', 'exec', 'vcc')
        A('v_mov_b32', 'v6', 4*slot)
        A('global_atomic_umax', 'v6', 'v5' if inv else 'v3', 's[40:41]')
        A('s_mov_b64', 'exec', -1)
    rep(15, 0, True)
    A('s_cmp_ge_u32', 's2', opt.get('nb', 128))
    A('s_cbranch_scc1', 'RT_A')
    for idx, slot in opt.get('rtb', [(1, 1), (5, 2), (7, 3), (10, 4), (13, 5)]): rep(idx, slot)
    A('s_branch', 'RT_X')
    A.label('RT_A')
    for idx, slot in opt.get('rta', [(1, 6), (3, 7), (4, 8), (5, 9), (8, 10)]): rep(idx, slot)
    A.label('RT_X')
    A('s_mov_b64', 'exec', 1)
    for idx, slot, inv in [(15, 11, True), (15, 12, False), (1, 13, False), (4, 14, False)]:
        A('v_mov_b32', 'v3', sr(STB + 2*idx))
        if inv: A('v_not_b32', 'v3', 'v3')
        A('v_mov_b32', 'v6', 4*slot)
        A('global_atomic_umax', 'v6', 'v3', 's[40:41]')
        A('s_waitcnt', 'vmcnt(0)')

def spin_begin(A, opt, key):
    if opt.get(key): A('s_memrealtime', 's[96:97]')
def spin_end(A, opt, key, lab):
    if not opt.get(key): return
    A('s_waitcnt', 'vmcnt(0) lgkmcnt(0)')
    A('s_add_u32', 's96', 's96', opt[key])
    A.label(lab)
    A('s_sleep', 4)
    A('s_memrealtime', 's[94:95]')
    A('s_waitcnt', 'lgkmcnt(0)')
    A('s_sub_u32', 's94', 's94', 's96')
    A('s_cmp_lt_i32', 's94', 0)
    A('s_cbranch_scc1', lab)
```

```python
from dsl import *
WS_AT = 0x000000
WS_O  = 0x200000
WS_KV = 0x400000
KVB   = 8704
WS_GP = 0x520000
WS_ST = 0x600000
WS_DB = 0x700000
WS_SZ = 0x1000000
LOG2E = 0x3fb8aa3b
def f2u(x):
    import struct
    return '0x%08x' % struct.unpack('<I', struct.pack('<f', x))[0]
def srd(A, d, base, size, off=None):
    A('s_mov_b32', sr(d), sr(base))
    A('s_and_b32', sr(d+1), sr(base+1), '0xffff')
    A('s_mov_b32', sr(d+2), hex(size))
    A('s_mov_b32', sr(d+3), '0x20000')
def kdesc(name, vgpr, accum, sgpr=102):
    return f'''.section .rodata,"a"
.p2align 6
.amdhsa_kernel {name}
  .amdhsa_next_free_vgpr {vgpr}
  .amdhsa_next_free_sgpr {sgpr}
  .amdhsa_accum_offset {accum}
  .amdhsa_group_segment_fixed_size 0
  .amdhsa_kernarg_size 120
  .amdhsa_user_sgpr_count 2
  .amdhsa_user_sgpr_kernarg_segment_ptr 1
  .amdhsa_system_sgpr_workgroup_id_x 1
.end_amdhsa_kernel
.text
'''
def khead(name):
    return f'''.globl {name}
.p2align 8
.type {name},@function
{name}:
'''
STB = 66
def stamp(A, opt, idx):
    if not opt.get('stamps'): return
    A('s_memrealtime' if (opt.get('rt') and not opt.get('cyc')) else 's_memtime', sr(STB + 2*idx, 2))
def stamps_flush(A, opt, n, sws, swave, base):
    if not opt.get('stamps'): return
    A('s_lshl_b32', 's98', 's2', 3)
    A('s_add_u32', 's98', 's98', sr(swave))
    A('s_lshl_b32', 's98', 's98', 7)
    A('s_add_u32', 's98', 's98', hex(WS_ST + base))
    A('s_waitcnt', 'vmcnt(0) lgkmcnt(0)')
    A('v_mov_b32', 'v2', 0)
    for i in list(range(n)) + ([15] if opt.get('rt') else []):
        A('v_mov_b32', 'v0', sr(STB + 2*i))
        A('v_mov_b32', 'v1', sr(STB + 2*i + 1))
        A('buffer_store_dwordx2', 'v[0:1]', 'v2', sr(sws, 4), 's98', mods=f'offen offset:{8*i}')
        A('s_waitcnt', 'vmcnt(0)')

def rt_report(A, opt, sws, swave):
    if not opt.get('rt'): return
    A('s_load_dwordx2', 's[40:41]', 's[0:1]', 104)
    A('v_mbcnt_lo_u32_b32', 'v1', -1, 0)
    A('v_mbcnt_hi_u32_b32', 'v1', -1, 'v1')
    A('s_lshl_b32', 's42', 's2', 10)
    A('s_and_b32', 's43', sr(swave), 1)
    A('s_lshl_b32', 's43', 's43', 9)
    A('s_add_u32', 's42', 's42', 's43')
    A('s_add_u32', 's42', 's42', hex(WS_ST))
    A('v_lshlrev_b32', 'v2', 3, 'v1')
    A('buffer_load_dword', 'v3', 'v2', sr(sws, 4), 's42', mods='offen')
    A('v_and_b32', 'v4', 15, 'v1')
    A('s_waitcnt', 'vmcnt(0) lgkmcnt(0)')
    A('v_not_b32', 'v5', 'v3')
    def rep(idx, slot, inv=False):
        A('v_cmp_eq_u32', 'vcc', idx, 'v4')
        A('s_mov_b64', 'exec', 'vcc')
        A('v_mov_b32', 'v6', 4*slot)
        A('global_atomic_umax', 'v6', 'v5' if inv else 'v3', 's[40:41]')
        A('s_mov_b64', 'exec', -1)
    rep(15, 0, True)
    A('s_cmp_ge_u32', 's2', opt.get('nb', 128))
    A('s_cbranch_scc1', 'RT_A')
    for idx, slot in opt.get('rtb', [(1, 1), (5, 2), (7, 3), (10, 4), (13, 5)]): rep(idx, slot)
    A('s_branch', 'RT_X')
    A.label('RT_A')
    for idx, slot in opt.get('rta', [(1, 6), (3, 7), (4, 8), (5, 9), (8, 10)]): rep(idx, slot)
    A.label('RT_X')
    A('s_mov_b64', 'exec', 1)
    for idx, slot, inv in [(15, 11, True), (15, 12, False), (1, 13, False), (4, 14, False)]:
        A('v_mov_b32', 'v3', sr(STB + 2*idx))
        if inv: A('v_not_b32', 'v3', 'v3')
        A('v_mov_b32', 'v6', 4*slot)
        A('global_atomic_umax', 'v6', 'v3', 's[40:41]')
        A('s_waitcnt', 'vmcnt(0)')

def spin_begin(A, opt, key):
    if opt.get(key): A('s_memrealtime', 's[96:97]')
def spin_end(A, opt, key, lab):
    if not opt.get(key): return
    A('s_waitcnt', 'vmcnt(0) lgkmcnt(0)')
    A('s_add_u32', 's96', 's96', opt[key])
    A.label(lab)
    A('s_sleep', 4)
    A('s_memrealtime', 's[94:95]')
    A('s_waitcnt', 'lgkmcnt(0)')
    A('s_sub_u32', 's94', 's94', 's96')
    A('s_cmp_lt_i32', 's94', 0)
    A('s_cbranch_scc1', lab)

def code_prefetch(A, opt, tag, nthreads, vtmp, vdst, n):
    if opt.get('nopf'): return
    A('s_getpc_b64', 's[38:39]')
    A.label(tag + '_PC')
    sh = {512: 5, 256: 6}[nthreads]
    A('v_lshlrev_b32', vr(vtmp), sh, 'v0')
    for k in range(n):
        if k: A('v_add_u32', vr(vtmp), 16384, vr(vtmp))
        if k == n - 1: A('v_min_u32', vr(vtmp), f'{tag}_END-{tag}_PC', vr(vtmp))
        A('global_load_dword', vr(vdst + k), vr(vtmp), 's[38:39]')
```

```python
from common import *
WS_AT = 0x000000
WS_O  = 0x200000
WS_KV = 0x400000
WS_CN = 0x420000
WS_GP = 0x520000
CN_KV, CN_O, CN_A = 0, 8, 24
T_WO, T_O, T_AT, T_EX = 0, 65536, 131072, 147456
vCN_ = 126
sWS_, sWO_, sOUT_ = 48, 52, 56
sRT_, sCT_ = 38, 39

def tail_coords(A, t0, t1):
    A('s_and_b32', sr(t0), 's2', 7)
    A('s_lshr_b32', sr(t1), 's2', 3)
    A('s_lshr_b32', sr(sCT_), sr(t1), 2)
    A('s_and_b32', sr(t1), sr(t1), 3)
    A('s_lshl_b32', sr(sRT_), sr(t0), 2)
    A('s_add_u32', sr(sRT_), sr(sRT_), sr(t1))

def wo_addr(A, vd, vt0, vt1):
    A('v_lshrrev_b32', vr(vt0), 2, 'v1')
    A('v_and_b32', vr(vt0), 4, vr(vt0))
    A('v_and_b32', vr(vt1), 7, 'v1')
    A('v_xor_b32', vr(vt0), vr(vt0), vr(vt1))
    A('v_lshlrev_b32', vr(vt0), 4, vr(vt0))
    A('v_lshrrev_b32', vr(vt1), 3, 'v1')
    A('v_lshl_add_u32', vr(vd), vr(vt1), 10, vr(vt0))

def wo_dma(A, chunks, vWo, t0, t1):
    A('s_lshl_b32', sr(t0), 's4', 13)
    A('s_lshl_b32', sr(t1), sr(sCT_), 7)
    A('s_add_u32', sr(t0), sr(t0), sr(t1))
    A('s_lshl_b32', sr(t1), 's4', 10)
    cur = 0
    for c in chunks:
        if c != cur: A('s_add_u32', sr(t0), sr(t0), (c - cur) * 65536)
        cur = c
        A('s_add_u32', 'm0', sr(t1), T_WO + c*8192)
        A('buffer_load_dwordx4', vr(vWo), sr(sWO_, 4), sr(t0), mods='offen lds')

def raw(A, *lines):
    for l in lines: A.raw('  ' + l)

def signal(A, voff, vone):
    raw(A, f'v_mov_b32 v{vone}, 1', 's_mov_b64 exec, 1', f'global_atomic_add v{voff}, v{vone}, s[36:37] sc1', 's_mov_b64 exec, -1')

def zcheck_issue(A, vd, vt):
    raw(A, f'v_lshlrev_b32 v{vt}, 5, v1', 's_mov_b64 exec, 0xff', f'global_load_dword v{vd}, v{vt}, s[34:35] sc1', 's_mov_b64 exec, -1')

def zcheck_wait(A, vd, vt, lab, vm):
    raw(A, f's_waitcnt vmcnt({vm})', 's_mov_b64 exec, 0xff', f'v_cmp_ne_u32 vcc, 16, v{vd}', f's_cbranch_vccz {lab}_OK', f'v_lshlrev_b32 v{vt}, 5, v1')
    bound_init(A)
    A.raw(f'{lab}_L:')
    bound_step(A, f'{lab}_OK')
    raw(A, f'global_load_dword v{vd}, v{vt}, s[34:35] sc1', 's_waitcnt vmcnt(0)', f'v_cmp_ne_u32 vcc, 16, v{vd}', f's_cbranch_vccnz {lab}_L')
    A.raw(f'{lab}_OK:')
    raw(A, 's_mov_b64 exec, -1')

SAFE = [False]
def bound_init(A):
    if SAFE[0]: raw(A, 's_mov_b32 s47, 0')
def bound_step(A, out):
    if SAFE[0]: raw(A, 's_add_u32 s47, s47, 1', 's_cmp_gt_u32 s47, 20000', f's_cbranch_scc1 {out}')
```

```python
from common2 import *

RS = 528
YB, XB = 0, 4*32*RS
XS = 27*RS
KB = XB + 4*XS
KS = 4576
UB = KB + 4*KS
US = 4128
assert UB + 4*US + 4 <= 163840
XIMM = 51000
XROWS = list(range(8)) + [256, 258, 260, 262, 264, 512, 516, 520, 768, 772, 776, 1024, 1032, 1280, 1288, 1536, 1544, 1792, 1800]
TILE = [[0, 1, 2, 3, 256, 256, 258, 260, 512, 516, 520, 1024, 768, 772, 776, 1536],
        [4, 5, 6, 7, 260, 260, 262, 264, 1032, 1280, 1288, 1288, 1544, 1792, 1800, 1800]]

def gen_a(A, opt):
    mimic = opt.get('mimic_a', False)
    sW = 4
    sU, sP, sWS = 40, 44, 48
    sD0, sD, sChl, sSet, sT0, sT1, sT2, sMY, sMX = 5, 6, 7, 3, 62, 63, 64, 65, 98
    vL, vT0, vT1, vT2, vT3 = 1, 2, 3, 4, 5
    vU = 8
    pA, pI, pCr, pCi, pDt, pDs = 16, 17, 18, 19, 20, 21
    A('s_and_b32', sr(sT0), 's2', 7)
    A('s_lshr_b32', sr(sT1), 's2', 3)
    A('s_sub_u32', sr(sT1), sr(sT1), 16)
    A('s_lshl_b32', sr(sD0), sr(sT0), 4)
    A('s_add_u32', sr(sD0), sr(sD0), sr(sT1))
    A('s_lshl_b32', sr(sD0), sr(sD0), 2)
    A('s_lshr_b32', sr(sChl), sr(sW), 1)
    A('s_and_b32', sr(sSet), sr(sW), 1)
    A('s_add_u32', sr(sD), sr(sD0), sr(sChl))
    A('v_lshlrev_b32', vr(vT0), 1, vr(vL))
    A('s_lshl_b32', sr(sT0), sr(sD), 1)
    A('s_add_u32', sr(sT0), sr(sT0), sr(sSet))
    A('s_lshl_b32', sr(sT0), sr(sT0), 7)
    A('s_lshl_b32', sr(sT1), sr(sD), 1)
    A('v_mov_b32', vr(vT1), 0)
    A('v_lshlrev_b32', vr(vT2), 12, 'v0')
    A('s_lshl_b32', sr(sT2), sr(sD0), 1)
    A('s_waitcnt', 'lgkmcnt(0)')
    for k, (ptr, dst) in enumerate([(18, pDt), (10, pA), (12, pI), (14, pCr), (16, pCi), (20, pDs)]):
        s = 44 + 4*(k % 4) if False else [44, 52, 56, 44, 52, 56][k]
        small = ptr in (18, 20)
        srd(A, s, ptr, 1024 if small else 512*256)
        A('buffer_load_ushort', vr(dst), vr(vT1 if small else vT0), sr(s, 4), sr(sT1 if small else sT0), mods='offen')
    srd(A, sU, 8, 2048*1024)
    for j in range(4):
        A('buffer_load_dwordx2', vr(vU + 2*j, 2), vr(vT2), sr(sU, 4), sr(sT2), mods=f'offen offset:{1024*j}' if j else 'offen')
    stamp(A, opt, 0)
    srd(A, sWS, 36, WS_SZ)
    A('v_mov_b32', vr(vT3), 0)
    A('s_mul_i32', sr(sT0), sr(sChl), KS)
    A('s_mul_i32', sr(sT1), sr(sSet), 240)
    A('s_add_u32', sr(sT0), sr(sT0), sr(sT1))
    A('s_add_u32', sr(sT0), sr(sT0), KB + 4096)
    A('v_min_u32', vr(vT1), 59, vr(vL))
    A('v_lshl_add_u32', vr(vT1), vr(vT1), 2, sr(sT0))
    A('ds_write_b32', vr(vT1), vr(vT3))
    A('s_mul_i32', sr(sT0), sr(sChl), US)
    A('s_add_u32', sr(sT0), sr(sT0), UB)
    A('v_and_b32', vr(vT1), 7, vr(vL))
    A('v_lshl_add_u32', vr(vT1), vr(vT1), 2, sr(sT0))
    A('ds_write_b32', vr(vT1), vr(vT3))
    A('s_mul_i32', sr(sMY), sr(sChl), 32*RS)
    A('s_lshl_b32', sr(sT0), sr(sSet), 8)
    A('s_add_u32', sr(sMY), sr(sMY), sr(sT0))
    A('s_mul_i32', sr(sMX), sr(sChl), XS)
    A('s_add_u32', sr(sMX), sr(sMX), sr(sT0))
    A('s_add_u32', sr(sMX), sr(sMX), XB - XIMM)
    vYa, vXa0, vXa1, vKw, vKr, vUa, vSh, vUf, vUw = 22, 23, 24, 25, 26, 28, 32, 33, 34
    A('v_and_b32', vr(vT0), 15, vr(vL))
    A('v_lshrrev_b32', vr(vT1), 4, vr(vL))
    A('v_mul_u32_u24', vr(vYa), RS, vr(vT0))
    A('v_lshl_add_u32', vr(vYa), vr(vT1), 4, vr(vYa))
    A('s_mul_i32', sr(sT0), sr(sChl), 32*RS)
    A('s_mul_i32', sr(sT1), sr(sSet), 16*RS)
    A('s_add_u32', sr(sT0), sr(sT0), sr(sT1))
    A('v_add_u32', vr(vYa), sr(sT0), vr(vYa))
    for T in range(2):
        rows = [XROWS.index(x) for x in TILE[T]]
        lo = sum(rows[i] << (8*i) for i in range(8)); hi = sum(rows[8+i] << (8*i) for i in range(8))
        d = vXa0 + T
        A('s_mov_b32', 's52', hex(lo & 0xffffffff)); A('s_mov_b32', 's53', hex(lo >> 32))
        A('s_mov_b32', 's54', hex(hi & 0xffffffff)); A('s_mov_b32', 's55', hex(hi >> 32))
        A('v_and_b32', vr(vT2), 7, vr(vT0))
        A('v_lshlrev_b32', vr(vT2), 3, vr(vT2))
        A('v_lshrrev_b64', vr(36, 2), vr(vT2), 's[52:53]')
        A('v_lshrrev_b64', vr(38, 2), vr(vT2), 's[54:55]')
        A('v_cmp_gt_u32', 'vcc', 8, vr(vT0))
        A('v_cndmask_b32', vr(d), vr(38), vr(36), 'vcc')
        A('v_and_b32', vr(d), 255, vr(d))
        A('v_mul_u32_u24', vr(d), RS, vr(d))
        A('v_lshl_add_u32', vr(d), vr(vT1), 4, vr(d))
        A('s_mul_i32', sr(sT0), sr(sChl), XS)
        A('s_add_u32', sr(sT0), sr(sT0), XB)
        A('v_add_u32', vr(d), sr(sT0), vr(d))
    A('s_mul_i32', sr(sT0), sr(sChl), KS)
    A('s_lshl_b32', sr(sT1), sr(sSet), 8)
    A('s_sub_u32', sr(sT2), sr(sT0), sr(sT1))
    A('s_add_u32', sr(sT2), sr(sT2), KB + 4080)
    A('v_lshlrev_b32', vr(vT2), 4, vr(vT0))
    A('v_lshl_add_u32', vr(vT2), vr(vT1), 9, vr(vT2))
    A('v_sub_u32', vr(vKw), sr(sT2), vr(vT2))
    vKw3 = 27
    A('v_lshlrev_b32', vr(vT2), 9, vr(vT1))
    A('v_sub_u32', vr(vKw3), vr(vKw), vr(vT2))
    A('v_subrev_u32', vr(vKw3), 512, vr(vKw3))
    A('s_add_u32', sr(sT2), sr(sT0), sr(sT1))
    A('s_add_u32', sr(sT2), sr(sT2), KB + 4064 - 3584)
    A('v_lshlrev_b32', vr(vT2), 5, vr(vT0))
    A('v_sub_u32', vr(vKr), sr(sT2), vr(vT2))
    A('v_lshl_add_u32', vr(vKr), vr(vT1), 4, vr(vKr))
    A('s_mul_i32', sr(sT0), sr(sChl), US)
    A('s_add_u32', sr(sT0), sr(sT0), UB)
    A('s_add_u32', sr(sT2), sr(sT0), sr(sT1))
    A('v_add_u32', vr(vT2), 1, vr(vT0))
    A('v_lshrrev_b32', vr(vT2), 1, vr(vT2))
    A('v_lshl_add_u32', vr(vT2), vr(vT1), 2, vr(vT2))
    A('v_lshl_add_u32', vr(vUa), vr(vT2), 2, sr(sT2))
    for k in range(1, 4): A('v_add_u32', vr(vUa+k), 1024*k, vr(vUa))
    A('v_and_b32', vr(vSh), 1, vr(vT0))
    A('v_xor_b32', vr(vSh), 1, vr(vSh))
    A('v_lshlrev_b32', vr(vSh), 4, vr(vSh))
    A('v_lshlrev_b32', vr(vUf), 5, vr(vT0))
    A('v_lshl_add_u32', vr(vUf), vr(vT1), 3, vr(vUf))
    vAo = 35
    A('v_lshlrev_b32', vr(vAo), 5, vr(vT0))
    A('v_and_b32', vr(vT2), 1, vr(vT1))
    A('v_lshl_add_u32', vr(vAo), vr(vT2), 9, vr(vAo))
    A('v_lshrrev_b32', vr(vT2), 1, vr(vT1))
    A('v_lshl_add_u32', vr(vAo), vr(vT2), 4, vr(vAo))
    A('s_lshl_b32', sr(sT1), sr(sSet), 11)
    A('s_add_u32', sr(sT0), sr(sT0), sr(sT1))
    A('s_add_u32', sr(sT0), sr(sT0), 32)
    A('v_add_u32', vr(vUf), sr(sT0), vr(vUf))
    A('v_lshlrev_b32', vr(vUw), 3, 'v0')
    A('v_add_u32', vr(vUw), UB + 32, vr(vUw))
    A('s_mov_b32', 's60', f2u(1.4426950408889634))
    def rne(v):
        A('v_cvt_pk_bf16_f32', vr(v), vr(v), vr(v))
        A('v_and_b32', vr(v), '0xffff0000', vr(v))
    for v in (pDt, pA):
        A('v_lshlrev_b32', vr(v), 16, vr(v))
        A('v_mul_f32', vr(v), 's60', vr(v))
        A('v_exp_f32', vr(v), vr(v))
        rne(v)
    stamp(A, opt, 1)
    for v in (pI, pCr, pCi): A('v_lshlrev_b32', vr(v), 16, vr(v))
    A('v_mul_f32', vr(pA), vr(pA), vr(pDt))
    A('v_mul_f32', vr(pI), vr(pI), vr(pDt))
    A('v_mul_f32', vr(pA), f2u(-1.4426950408889634), vr(pA))
    A('v_mul_f32', vr(pI), '0.15915494', vr(pI))
    A('v_add_f32', vr(pDt), vr(pDt), vr(pDt))
    W1, W8, W256, W2, W4, W32 = 40, 42, 44, 46, 48, 50
    def anchor(d, p):
        e, th = 36, 37
        if p == 1:
            A('v_exp_f32', vr(e), vr(pA)); A('v_fract_f32', vr(th), vr(pI))
        else:
            A('v_mul_f32', vr(e), f2u(p), vr(pA)); A('v_mul_f32', vr(th), f2u(p), vr(pI))
            A('v_exp_f32', vr(e), vr(e)); A('v_fract_f32', vr(th), vr(th))
        A('v_cos_f32', vr(d), vr(th)); A('v_sin_f32', vr(d+1), vr(th))
        A('v_pk_mul_f32', vr(d, 2), vr(d, 2), vr(e, 2), mods='op_sel_hi:[1,0]')
    anchor(W8, 8); anchor(W256, 256); anchor(W1, 1)
    def cmuls(lst):
        for (d, a, b) in lst: A('v_pk_mul_f32', vr(d, 2), vr(a, 2), vr(b, 2), mods='op_sel:[0,0] op_sel_hi:[0,1]')
        for (d, a, b) in lst: A('v_pk_fma_f32', vr(d, 2), vr(a, 2), vr(b, 2), vr(d, 2), mods='op_sel:[1,1,0] op_sel_hi:[1,0,1] neg_lo:[1,0,0]')
    pk = [100]
    def put(rows, isx):
        A('s_mov_b32', 'm0', sr(sMX if isx else sMY))
        regs = []
        for (row, v) in rows:
            t = pk[0]; pk[0] = 100 + (pk[0] - 100 + 1) % 16
            if v is None: A('v_mov_b32', vr(t), '0x3f80')
            else: A('v_cvt_pk_bf16_f32', vr(t), vr(v), ('-' if isx else '') + vr(v+1))
            regs.append((row, t))
        for (row, t) in regs:
            off = XIMM + XROWS.index(row)*RS if isx else row*RS
            A('ds_write_addtid_b32', vr(t), mods=f'offset:{off}')
    Y = lambda b: 52 + 2*(b % 8)
    X0 = pCr
    A('v_pk_mul_f32', vr(X0, 2), vr(X0, 2), vr(pDt, 2), mods='op_sel_hi:[1,0]')
    XA = 68
    xa = lambda i: XA + 2*i
    cmuls([(Y(2), W8, W8), (xa(0), X0, W256), (W2, W1, W1), (xa(8), X0, W1)])
    cmuls([(Y(3), Y(2), W8), (W32, Y(2), Y(2)), (xa(1), xa(0), W256), (W4, W2, W2), (xa(9), X0, W2)])
    put([(0, None), (1, W8), (2, Y(2)), (3, Y(3)), (4, W32)], False)
    cmuls([(Y(5), W8, W32), (Y(6), Y(2), W32), (Y(7), Y(3), W32), (Y(8), W32, W32), (xa(2), xa(1), W256), (xa(10), xa(8), W2), (xa(11), X0, W4), (xa(12), xa(8), W4)])
    put([(0, X0), (1, xa(8)), (2, xa(9)), (3, xa(10)), (4, xa(11)), (5, xa(12)), (256, xa(0)), (512, xa(1)), (768, xa(2))], True)
    put([(b, Y(b)) for b in range(5, 9)], False)
    chain = [(1024, 3, 2), (1280, 4, 3), (1536, 5, 4), (1792, 6, 5)]
    leaf = [(6, xa(9), W4), (7, xa(10), W4), (258, xa(0), W2), (260, xa(0), W4), (264, xa(0), W8), (516, xa(1), W4), (520, xa(1), W8),
            (772, xa(2), W4), (776, xa(2), W8), (262, None, W2), (1032, xa(3), W8), (1288, xa(4), W8), (1544, xa(5), W8), (1800, xa(6), W8)]
    sched = [([chain[0]], leaf[0:2]), ([chain[1]], leaf[2:4]), ([chain[2]], [leaf[9], leaf[4], leaf[5]]), ([chain[3]], leaf[6:9]), ([], leaf[10:13]), ([], leaf[13:14])]
    x260 = None
    for gi, (ch, lf) in enumerate(sched):
        b0 = 9 + 4*gi
        lst = [(Y(b), Y(b-4), W32) for b in range(b0, min(b0 + 4, 32))]
        rows = []
        for (row, di, si) in ch:
            lst.append((xa(di), xa(si), W256)); rows.append((row, xa(di)))
        for k, (row, src, mul) in enumerate(lf):
            d = xa(11 + k) if row != 260 else xa(7)
            if row == 262: src = xa(7)
            lst.append((d, src, mul)); rows.append((row, d))
        cmuls(lst)
        put([(b, Y(b)) for b in range(b0, min(b0 + 4, 32))], False)
        put(rows, True)
    for c in range(4):
        w = c >> 1
        sel = '0x07060302' if c & 1 else '0x05040100'
        A('s_mov_b32', sr(sT0), sel)
        A('v_perm_b32', vr(36), vr(vU + 2 + w), vr(vU + w), sr(sT0))
        A('v_perm_b32', vr(37), vr(vU + 6 + w), vr(vU + 4 + w), sr(sT0))
        A('ds_write_b64', vr(vUw), vr(36, 2), mods=f'offset:{c*US}')
        A.nop(1)
    stamp(A, opt, 2)
    A('s_waitcnt', 'lgkmcnt(0)')
    A('s_barrier')
    stamp(A, opt, 3)
    t0, t1, fY, fX = 40, 44, 48, 64
    def RK(s):
        k = s % 4
        A('ds_read_b128', vr(fY + 4*k, 4), vr(vYa), mods=f'offset:{64*s}')
        A('ds_read_b128', vr(fX + 8*k, 4), vr(vXa0), mods=f'offset:{64*s}')
        A('ds_read_b128', vr(fX + 8*k + 4, 4), vr(vXa1), mods=f'offset:{64*s}')
    for s in range(3): RK(s)
    for s in range(8):
        if s + 3 < 8: RK(s + 3)
        k = s % 4
        A('v_mfma_f32_16x16x32_bf16', vr(t0, 4), vr(fX + 8*k, 4), vr(fY + 4*k, 4), '0' if s == 0 else vr(t0, 4))
        A('v_mfma_f32_16x16x32_bf16', vr(t1, 4), vr(fX + 8*k + 4, 4), vr(fY + 4*k, 4), '0' if s == 0 else vr(t1, 4))
    o = 48
    A('v_and_b32', vr(vT2), 1, vr(vL))
    A('v_cmp_eq_u32', 'vcc', 0, vr(vT2))
    A('s_mov_b32', 'exec_hi', 0)
    A('v_cvt_pk_bf16_f32', vr(o), vr(t1+3), vr(t1+2))
    A('v_cvt_pk_bf16_f32', vr(o+1), vr(t1+1), vr(t1))
    A('v_cvt_pk_bf16_f32', vr(o+2), vr(t0+3), vr(t0+2))
    A('v_cvt_pk_bf16_f32', vr(o+3), vr(t0+1), vr(t0))
    A('s_mov_b32', 'exec_lo', 0)
    A('s_mov_b32', 'exec_hi', -1)
    A('v_cvt_pk_bf16_f32', vr(o), vr(t0+2), vr(t0+2))
    A('v_cvt_pk_bf16_f32', vr(o+1), vr(t0+1), vr(t0+1))
    A('v_cvt_pk_bf16_f32', vr(o+2), vr(t0+1), vr(t0))
    A('v_cvt_pk_bf16_f32', vr(o+3), vr(t0), vr(t0))
    for q, (own, nxt) in enumerate([(t0+3, t1), (t1+1, t1+2)]):
        d = o + 4 + 4*q
        A('v_cndmask_b32', vr(vT2), vr(nxt), vr(own), 'vcc')
        A('v_cvt_pk_bf16_f32', vr(d), vr(nxt), vr(nxt))
        A('v_cvt_pk_bf16_f32', vr(d+1), vr(nxt), vr(vT2))
        A('v_cvt_pk_bf16_f32', vr(d+2), vr(own), vr(own))
        A('v_mov_b32', vr(d+3), vr(d+2))
        A('ds_write_b128', vr(vKw3), vr(d, 4), mods='offset:512' if q == 0 else '')
    A('s_mov_b64', 'exec', -1)
    A('ds_write_b128', vr(vKw), vr(o, 4))
    vWoT, vZC, vCn = 8, 9, vCN_
    wo_addr(A, vWoT, vT2, vT3)
    srd(A, sWO_, 28, 512*1024)
    tail_coords(A, sT0, sT1)
    A('s_and_b32', sr(sT0), 's2', 7)
    A('s_lshl_b32', sr(sT0), sr(sT0), 7)
    A('s_add_u32', sr(sT0), sr(sT0), hex(WS_CN + 128*CN_A))
    A('v_mov_b32', vr(vCn), sr(sT0))
    A('s_waitcnt', 'lgkmcnt(0)')
    A('s_barrier')
    stamp(A, opt, 4)
    wo_dma(A, list(range(8)), vWoT, sT0, sT1)
    A('s_cmp_lg_u32', sr(sW), 0)
    A('s_cbranch_scc1', 'A_NOZL')
    zcheck_issue(A, vZC, vT2)
    A.label('A_NOZL')
    if opt.get('dumpk'):
        A('s_mul_i32', sr(sT0), sr(sChl), KS)
        A('s_add_u32', sr(sT0), sr(sT0), KB)
        A('v_lshl_add_u32', vr(vT2), vr(vL), 4, sr(sT0))
        A('v_lshlrev_b32', vr(vT3), 4, vr(vL))
        A('s_lshl_b32', sr(sT0), sr(sD), 13)
        A('s_add_u32', sr(sT0), sr(sT0), hex(WS_DB))
        for j in range(4):
            A('ds_read_b128', vr(48, 4), vr(vT2), mods=f'offset:{1024*j}')
            A('buffer_store_dwordx4', vr(48, 4), vr(vT3), sr(sWS, 4), sr(sT0), mods=f'offen offset:{1024*j}')
            A('s_waitcnt', 'vmcnt(0)')
    acc, raw, al = 40, 72, 96
    def RA(n):
        a, rr = n >> 2, n & 3
        r = raw + 6*(n % 4)
        o0 = 128*(a & 1) + 16*rr
        A('ds_read2_b32', vr(r, 2), vr(vUa + (a >> 1)), mods=f'offset0:{o0} offset1:{o0+1}')
        A('ds_read2_b32', vr(r+2, 2), vr(vUa + (a >> 1)), mods=f'offset0:{o0+2} offset1:{o0+3}')
        A('ds_read_b32', vr(r+4), vr(vUa + (a >> 1)), mods=f'offset:{4*(o0+4)}')
    def AL(n):
        r = raw + 6*(n % 4); d = al + 4*(n % 4)
        for k in range(4): A('v_alignbit_b32', vr(d+k), vr(r+k+1), vr(r+k), vr(vSh))
    def RB(rr):
        for b in range(8):
            A('ds_read_b128', ar(32*rr + 4*b, 4), vr(vKr), mods=f'offset:{3584 - 512*b + 64*rr}')
    RA(0); RB(0); RA(1); AL(0); RA(2)
    started = set()
    for n in range(32):
        a, rr = n >> 2, n & 3
        nb = 8 - a
        for b in range(nb):
            j = a + b
            A('v_mfma_f32_16x16x32_bf16', vr(acc + 4*j, 4), vr(al + 4*(n % 4), 4), ar(32*rr + 4*b, 4), vr(acc + 4*j, 4) if j in started else '0')
            started.add(j)
            if b == 0:
                if n < 3: RB(n + 1)
                if n + 3 < 32: RA(n + 3)
            if b == min(1, nb - 1) and n + 1 < 32: AL(n + 1)
    stamp(A, opt, 5)
    vEx = 36
    A('s_lshl_b32', sr(sT0), sr(sW), 12)
    A('s_add_u32', sr(sT0), sr(sT0), 65536)
    A('v_lshl_add_u32', vr(vEx), vr(vL), 4, sr(sT0))
    A('v_xor_b32', vr(vEx+1), 4096, vr(vEx))
    A('s_cmp_eq_u32', sr(sSet), 0)
    A('s_cbranch_scc1', 'A_SET0')
    for j in range(4):
        A('ds_write_b128', vr(vEx), vr(acc + 4*j, 4), mods=f'offset:{1024*j}')
    for k in range(16): A('v_mov_b32', vr(acc + k), vr(acc + 16 + k))
    A('s_branch', 'A_SETX')
    A.label('A_SET0')
    A.nop(8)
    for j in range(4):
        A('ds_write_b128', vr(vEx), vr(acc + 16 + 4*j, 4), mods=f'offset:{1024*j}')
    A.label('A_SETX')
    uu, ex = 72, 80
    for j in range(4): A('ds_read_b64', vr(uu + 2*j, 2), vr(vUf), mods=f'offset:{512*j}')
    A('v_lshlrev_b32', vr(pDs), 16, vr(pDs))
    A('s_lshl_b32', sr(sT0), sr(sD), 12)
    A('s_lshl_b32', sr(sT1), sr(sSet), 11)
    A('s_add_u32', sr(sT0), sr(sT0), sr(sT1))
    A('s_cmp_lg_u32', sr(sW), 0)
    A('s_cbranch_scc1', 'A_NOZW')
    zcheck_wait(A, vZC, vT2, 'A_ZW', 0)
    A.label('A_NOZW')
    A('s_waitcnt', 'lgkmcnt(0)')
    A('s_barrier')
    stamp(A, opt, 6)
    for j in range(4): A('ds_read_b128', vr(ex + 4*j, 4), vr(vEx+1), mods=f'offset:{1024*j}')
    ud = 96
    for k in range(8):
        A('v_lshlrev_b32', vr(ud + 2*k), 16, vr(uu + k))
        A('v_and_b32', vr(ud + 2*k + 1), '0xffff0000', vr(uu + k))
        if mimic:
            A('v_mul_f32', vr(ud + 2*k), vr(ud + 2*k), vr(pDs))
            A('v_mul_f32', vr(ud + 2*k + 1), vr(ud + 2*k + 1), vr(pDs))
            A('v_cvt_pk_bf16_f32', vr(uu + k), vr(ud + 2*k), vr(ud + 2*k + 1))
            A('v_lshlrev_b32', vr(ud + 2*k), 16, vr(uu + k))
            A('v_and_b32', vr(ud + 2*k + 1), '0xffff0000', vr(uu + k))
        else:
            A('v_fma_f32', vr(acc + 2*k), vr(ud + 2*k), vr(pDs), vr(acc + 2*k))
            A('v_fma_f32', vr(acc + 2*k + 1), vr(ud + 2*k + 1), vr(pDs), vr(acc + 2*k + 1))
    for k in range(8):
        A('v_pk_add_f32', vr(acc + 2*k, 2), vr(acc + 2*k, 2), vr(ex + 2*k, 2))
        if mimic:
            A('v_cvt_pk_bf16_f32', vr(uu + k), vr(acc + 2*k), vr(acc + 2*k + 1))
            A('v_lshlrev_b32', vr(acc + 2*k), 16, vr(uu + k))
            A('v_and_b32', vr(acc + 2*k + 1), '0xffff0000', vr(uu + k))
            A('v_pk_add_f32', vr(acc + 2*k, 2), vr(acc + 2*k, 2), vr(ud + 2*k, 2))
        A('v_cvt_pk_bf16_f32', vr(uu + k), vr(acc + 2*k), vr(acc + 2*k + 1))
        if k & 3 == 3:
            b = uu + k - 3
            A('v_permlane16_swap_b32', vr(b), vr(b+2))
            A('v_permlane16_swap_b32', vr(b+1), vr(b+3))
            A('buffer_store_dwordx4', vr(b, 4), vr(vAo), sr(sWS, 4), sr(sT0), mods='offen' + (' offset:1024' if k == 7 else '') + ' sc1')
    stamp(A, opt, 7)
```

```python
from common2 import *

E_ = 131072
def softmax_pm(A, p, ph, tmp, fill=None):
    mx, mn = tmp, tmp + 2
    e = tmp + 4
    sm = tmp + 20
    A('v_max3_f32', vr(mx), vr(p), vr(p+1), vr(p+2))
    A('v_min3_f32', vr(mn), vr(p), vr(p+1), vr(p+2))
    A('v_max3_f32', vr(mx+1), vr(p+3), vr(p+4), vr(p+5))
    A('v_min3_f32', vr(mn+1), vr(p+3), vr(p+4), vr(p+5))
    for k in (6, 10):
        A('v_max3_f32', vr(mx), vr(mx), vr(p+k), vr(p+k+1))
        A('v_min3_f32', vr(mn), vr(mn), vr(p+k), vr(p+k+1))
        A('v_max3_f32', vr(mx+1), vr(mx+1), vr(p+k+2), vr(p+k+3))
        A('v_min3_f32', vr(mn+1), vr(mn+1), vr(p+k+2), vr(p+k+3))
    A('v_max3_f32', vr(mx), vr(mx), vr(p+14), vr(p+15))
    A('v_min3_f32', vr(mn), vr(mn), vr(p+14), vr(p+15))
    A('v_max_f32', vr(mx), vr(mx), vr(mx+1))
    A('v_min_f32', vr(mn), vr(mn), vr(mn+1))
    A('v_mul_f32', vr(mx), 's61', vr(mx))
    A('v_mul_f32', vr(mn), 's60', vr(mn))
    for sgn in range(2):
        b = mx if sgn == 0 else mn
        d = e if sgn == 0 else p
        sel = 'op_sel_hi:[1,0,0]' if sgn == 0 else 'op_sel:[0,1,0] op_sel_hi:[1,1,0]'
        for k in range(8):
            A('v_pk_fma_f32', vr(d+2*k, 2), vr(p+2*k, 2), 's[60:61]', vr(b, 2), mods=sel)
        for k in range(16):
            A('v_exp_f32', vr(d+k), vr(d+k))
        s8 = ph + 8*sgn
        for k in range(4):
            A('v_pk_add_f32', vr(s8+2*k, 2), vr(d+4*k, 2), vr(d+4*k+2, 2))
        A('v_pk_add_f32', vr(s8, 2), vr(s8, 2), vr(s8+2, 2))
        A('v_pk_add_f32', vr(s8+4, 2), vr(s8+4, 2), vr(s8+6, 2))
        A('v_pk_add_f32', vr(s8, 2), vr(s8, 2), vr(s8+4, 2))
        A('v_add_f32', vr(sm), vr(s8), vr(s8+1))
        A('v_rcp_f32', vr(sm), vr(sm))
        for k in range(8):
            A('v_pk_mul_f32', vr(d+2*k, 2), vr(d+2*k, 2), vr(sm, 2), mods='op_sel_hi:[1,0]')
        for k in range(8):
            A('v_cvt_pk_bf16_f32', vr(s8+k), vr(d+2*k), vr(d+2*k+1))

def gen_b(A, opt):
    sW = 4
    sU, sWQ, sWS, sPH, sGW = 40, 44, sWS_, 52, 56
    sRB, sHQ, sKVh, sKVw, sT0, sT1, sT2, sMx, sMw, sXb, sWb, sHH = 5, 6, 7, 3, 62, 63, 64, 65, 98, 99, 100, 101
    vL = 1
    vT0, vT1, vT2, vT3 = 2, 3, 4, 5
    vXo0, vXo1, vWo, vWoT = 6, 7, 8, 9
    vXa = 10
    vWa, vWq = 14, 15
    accK, accV = 16, 32
    vF = 48
    vPH = 80
    vGX = 112
    vZC = 127
    A('s_and_b32', sr(sT0), 's2', 7)
    A('s_lshr_b32', sr(sT1), 's2', 3)
    A('s_lshr_b32', sr(sRB), sr(sT0), 1)
    A('s_lshl_b32', sr(sRB), sr(sRB), 2)
    A('s_and_b32', sr(sT2), sr(sT1), 3)
    A('s_add_u32', sr(sRB), sr(sRB), sr(sT2))
    A('s_and_b32', sr(sT0), sr(sT0), 1)
    A('s_lshr_b32', sr(sT1), sr(sT1), 2)
    A('s_lshl_b32', sr(sHQ), sr(sT0), 2)
    A('s_add_u32', sr(sHQ), sr(sHQ), sr(sT1))
    A('s_lshr_b32', sr(sHH), sr(sW), 2)
    A('v_lshrrev_b32', vr(vT0), 3, vr(vL))
    A('v_and_b32', vr(vT1), 7, vr(vL))
    A('v_lshrrev_b32', vr(vT2), 4, vr(vL))
    A('v_xor_b32', vr(vXo0), vr(vT1), vr(vT2))
    A('v_lshlrev_b32', vr(vXo0), 4, vr(vXo0))
    A('v_lshl_add_u32', vr(vXo0), vr(vT0), 10, vr(vXo0))
    A('v_xor_b32', vr(vXo1), 64, vr(vXo0))
    A('v_add_u32', vr(vXo1), 8192, vr(vXo1))
    A('v_and_b32', vr(vT2), 1, vr(vT2))
    A('v_lshlrev_b32', vr(vT2), 2, vr(vT2))
    A('v_xor_b32', vr(vT1), vr(vT1), vr(vT2))
    A('v_lshlrev_b32', vr(vT1), 4, vr(vT1))
    A('v_mul_u32_u24', vr(vWo), 3072, vr(vT0))
    A('v_add_u32', vr(vWo), vr(vWo), vr(vT1))
    A('v_lshl_add_u32', vr(vWoT), vr(vT0), 10, vr(vT1))
    A('s_lshl_b32', sr(sXb), sr(sRB), 3)
    A('s_add_u32', sr(sXb), sr(sXb), sr(sW))
    A('s_lshl_b32', sr(sXb), sr(sXb), 14)
    A('s_mul_i32', sr(sWb), sr(sW), 8*3072)
    A('s_lshl_b32', sr(sT0), sr(sHQ), 7)
    A('s_add_u32', sr(sWb), sr(sWb), sr(sT0))
    A('s_lshl_b32', sr(sMx), sr(sW), 11)
    A('s_lshl_b32', sr(sMw), sr(sW), 10)
    A('s_mul_i32', sr(sKVh), sr(sHQ), KVB)
    A('s_add_u32', sr(sKVh), sr(sKVh), hex(WS_KV))
    A('s_mul_i32', sr(sT0), sr(sRB), KVB // 16)
    A('s_add_u32', sr(sT0), sr(sT0), sr(sKVh))
    A('s_lshl_b32', sr(sT1), 's2', 7)
    A('s_add_u32', sr(sT1), sr(sT1), hex(WS_CN))
    vZ = 16
    A('v_lshl_add_u32', vr(vT2), 'v0', 4, sr(sT0))
    A('v_mov_b32', vr(vT3), sr(sT1))
    A('v_cmp_gt_u32', 'vcc', 34, 'v0')
    A('v_cndmask_b32', vr(vT2), vr(vT3), vr(vT2), 'vcc')
    A('v_cmp_gt_u32', 'vcc', 35, 'v0')
    A('v_mov_b32', vr(vT3), '0x80000000')
    A('v_cndmask_b32', vr(vT2), vr(vT3), vr(vT2), 'vcc')
    for k in range(4): A('v_mov_b32', vr(vZ+k), 0)
    A('s_waitcnt', 'lgkmcnt(0)')
    srd(A, sU, 8, 2048*1024)
    srd(A, sWQ, 24, 512*3072)
    srd(A, sWS, 36, WS_SZ)
    def stage(i):
        sl = (i & 3) * 16384
        A('s_add_u32', sr(sT0), sr(sXb), 128*i)
        A('s_add_u32', 'm0', sr(sMx), sl)
        A('s_add_u32', sr(sT1), sr(sWb), 64*3072*i)
        A('buffer_load_dwordx4', vr(vXo0), sr(sU, 4), sr(sT0), mods='offen lds')
        A('s_add_u32', 'm0', sr(sMx), sl + 1024)
        A('buffer_load_dwordx4', vr(vXo1), sr(sU, 4), sr(sT0), mods='offen lds')
        A('s_add_u32', 'm0', sr(sMw), 65536 + sl - 1024)
        A('buffer_load_dwordx4', vr(vWo), sr(sWQ, 4), sr(sT1), mods='offen offset:1024 lds')
        A('s_add_u32', 'm0', sr(sMw), 65536 + sl + 8192 - 2048)
        A('buffer_load_dwordx4', vr(vWo), sr(sWQ, 4), sr(sT1), mods='offen offset:2048 lds')
        A.mark(f'st{i}')
    WQ_AT = [0, 8192, 65536, 65536 + 8192, 16384, 16384 + 8192, 65536 + 16384, 65536 + 16384 + 8192]
    def wq_chunk(j):
        A('s_add_u32', sr(sT1), sr(sWb), 64*3072*j)
        A('s_add_u32', 'm0', sr(sMw), WQ_AT[j])
        A('buffer_load_dwordx4', vr(vWo), sr(sWQ, 4), sr(sT1), mods='offen lds')
    A('buffer_store_dwordx4', vr(vZ, 4), vr(vT2), sr(sWS, 4), 0, mods='offen sc1')
    A.mark('zero')
    stage(0)
    stamp(A, opt, 0)
    srd(A, sPH, 26, 32*512)
    A('v_lshlrev_b32', vr(vT0), 2, vr(vL))
    A('s_lshl_b32', sr(sT0), sr(sHQ), 3)
    A('s_add_u32', sr(sT0), sr(sT0), sr(sW))
    A('s_lshl_b32', sr(sT0), sr(sT0), 8)
    A('s_lshl_b32', sr(sT1), sr(sW), 8)
    A('s_add_u32', 'm0', sr(sT1), E_)
    A('buffer_load_dword', vr(vT0), sr(sPH, 4), sr(sT0), mods='offen lds')
    stage(1)
    stage(2)
    stage(3)
    srd(A, sWO_, 28, 512*1024)
    srd(A, sGW, 30, 1024)
    tail_coords(A, sT0, sT1)
    A('v_lshrrev_b32', vr(vT1), 5, vr(vL))
    A('v_and_b32', vr(vT0), 31, vr(vL))
    A('v_bfe_u32', vr(vT2), vr(vL), 1, 3)
    A('v_xor_b32', vr(vT2), vr(vT2), vr(vT1))
    A('v_lshlrev_b32', vr(vT2), 4, vr(vT2))
    A('v_lshl_add_u32', vr(vXa), vr(vT0), 7, vr(vT2))
    A('s_and_b32', sr(sT0), sr(sW), 3)
    A('s_lshl_b32', sr(sT2), sr(sT0), 12)
    A('v_add_u32', vr(vXa), sr(sT2), vr(vXa))
    for t in range(1, 4):
        A('v_xor_b32', vr(vXa+t), 32*t, vr(vXa))
    vR, vC = 104, 105
    A('v_bfe_u32', vr(vR), vr(vL), 2, 2)
    A('v_and_b32', vr(vC), 3, vr(vL))
    A('v_lshlrev_b32', vr(vC), 3, vr(vC))
    A('v_bfe_u32', vr(vT2), vr(vL), 4, 1)
    A('v_lshl_add_u32', vr(vC), vr(vT2), 5, vr(vC))
    A('v_bfe_u32', vr(vT3), vr(vL), 3, 1)
    A('v_lshl_add_u32', vr(vC), vr(vT3), 6, vr(vC))
    A('s_lshl_b32', sr(sT2), sr(sHH), 6)
    A('v_xor_b32', vr(vWq), sr(sT2), vr(vC))
    A('v_lshl_add_u32', vr(vT3), vr(vT1), 3, vr(vR))
    A('v_lshl_add_u32', vr(vWq), vr(vT3), 7, vr(vWq))
    A('v_add_u32', vr(vWa), 65536, vr(vWq))
    vPa, vGa = 106, 107
    A('v_lshl_add_u32', vr(vT3), vr(vT1), 2, vr(vR))
    A('v_lshlrev_b32', vr(vPa), 5, vr(vT3))
    A('v_lshl_add_u32', vr(vPa), vr(vT2), 4, vr(vPa))
    A('v_bfe_u32', vr(vT3), vr(vL), 1, 1)
    A('v_lshl_add_u32', vr(vPa), vr(vT3), 3, vr(vPa))
    A('s_lshl_b32', sr(sT2), sr(sHH), 10)
    A('s_add_u32', sr(sT2), sr(sT2), E_)
    A('v_add_u32', vr(vPa), sr(sT2), vr(vPa))
    A('s_lshl_b32', sr(sT2), sr(sHH), 6)
    A('v_xor_b32', vr(vGa), sr(sT2), vr(vXa))
    A('v_xor_b32', vr(vGa+1), 32, vr(vGa))
    A('s_mov_b32', 's60', f2u(1.4426950408889634))
    A('s_mov_b32', 's61', f2u(-1.4426950408889634))
    vVw, vEw = 110, 111
    A('s_lshl_b32', sr(sT2), sr(sT0), 10)
    A('v_lshl_add_u32', vr(vT3), vr(vT0), 5, sr(sT2))
    A('v_lshl_add_u32', vr(vVw), vr(vT1), 4, vr(vT3))
    A('s_lshl_b32', sr(sT2), sr(sHH), 13)
    A('s_add_u32', sr(sT2), sr(sT2), 98304)
    A('v_add_u32', vr(vVw), sr(sT2), vr(vVw))
    A('v_lshl_add_u32', vr(vEw), vr(vT1), 13, vr(vT3))
    A('s_lshl_b32', sr(sT2), sr(sHH), 14)
    A('s_add_u32', sr(sT2), sr(sT2), E_)
    A('v_add_u32', vr(vEw), sr(sT2), vr(vEw))
    vPr, vVr, vKo, vZo, vCn = 124, 125, 122, 123, vCN_
    A('s_lshl_b32', sr(sT0), sr(sW), 12)
    A('s_add_u32', sr(sT0), sr(sT0), E_)
    A('v_lshl_add_u32', vr(vPr), vr(vL), 3, sr(sT0))
    A('s_lshr_b32', sr(sT0), sr(sW), 1)
    A('s_lshl_b32', sr(sT0), sr(sT0), 12)
    A('s_add_u32', sr(sT0), sr(sT0), 98304)
    A('v_lshl_add_u32', vr(vVr), vr(vL), 3, sr(sT0))
    A('v_lshlrev_b32', vr(vKo), 2, vr(vL))
    A('v_and_b32', vr(vT3), 15, vr(vL))
    A('v_and_b32', vr(vT2), 48, vr(vL))
    A('v_lshl_add_u32', vr(vT2), vr(vT3), 2, vr(vT2))
    A('v_cmp_gt_u32', 'vcc', 4, vr(vT3))
    A('v_mov_b32', vr(vZo), '0x80000000')
    A('v_cndmask_b32', vr(vZo), vr(vZo), vr(vT2), 'vcc')
    A('s_add_u32', sr(sKVw), sr(sKVh), sr(sMw))
    A.waitmark('zero')
    A('s_cmp_lg_u32', sr(sW), 0)
    A('s_cbranch_scc1', 'B_NOZ')
    A('s_lshl_b32', sr(sT0), sr(sHQ), 5)
    raw(A, f'v_mov_b32 v{vT2}, s{sT0}', f'v_mov_b32 v{vT3}, 1', 's_mov_b64 exec, 1', f'global_atomic_add v{vT2}, v{vT3}, s[34:35] sc1', 's_mov_b64 exec, -1')
    A.label('B_NOZ')
    def R(i, t):
        sl = (i & 3) * 16384
        A('ds_read_b128', ar(16*i + 4*t, 4), vr(vXa+t), mods=f'offset:{sl}')
        for part in range(2):
            for j in range(2):
                A('ds_read_b64_tr_b16', vr(vF + 8*t + 4*part + 2*j, 2), vr(vWa), mods=f'offset:{sl + part*8192 + (16*t + 4*j)*128}')
    def M(i, t):
        first = (i == 0 and t == 0)
        A('v_mfma_f32_32x32x16_bf16', vr(accK, 16), vr(vF + 8*t, 4), ar(16*i + 4*t, 4), '0' if first else vr(accK, 16))
        A('v_mfma_f32_32x32x16_bf16', vr(accV, 16), vr(vF + 8*t + 4, 4), ar(16*i + 4*t, 4), '0' if first else vr(accV, 16))
    A.waitmark('st0')
    A('s_barrier')
    stamp(A, opt, 1)
    R(0, 0); R(0, 1)
    for i in range(8):
        sl = (i & 3) * 16384
        R(i, 2); R(i, 3)
        A('s_cmp_lg_u32', sr(sHQ), i)
        A('s_cbranch_scc1', f'B_NG{i}')
        raw(A, f'ds_read_b128 v[{vGX}:{vGX+3}], v{vGa} offset:{sl}', f'ds_read_b128 v[{vGX+4}:{vGX+7}], v{vGa+1} offset:{sl}')
        A.label(f'B_NG{i}')
        M(i, 0); M(i, 1)
        if i < 7: A.waitmark(f'st{i+1}', 0)
        else: A('s_waitcnt', 'lgkmcnt(0)')
        A('s_barrier')
        if i in (0, 3, 6): stamp(A, opt, {0: 2, 3: 3, 6: 4}[i])
        if i + 4 < 8: stage(i + 4)
        elif i == 4:
            for j in range(4): wq_chunk(j)
            A('s_cmp_lg_u32', sr(sW), 0)
            A('s_cbranch_scc1', 'B_NOZL')
            zcheck_issue(A, vZC, vT2)
            A.label('B_NOZL')
        elif i == 5:
            for j in range(4, 8): wq_chunk(j)
            A.mark('wq')
        elif i == 6: wo_dma(A, [4, 5], vWoT, sT0, sT1)
        elif i == 7: wo_dma(A, [6, 7], vWoT, sT0, sT1)
        if i < 7: R(i + 1, 0); R(i + 1, 1)
        if i == 0:
            for h in range(2):
                for j in range(2):
                    A('ds_read_b64_tr_b16', vr(vPH + 4*h + 2*j, 2), vr(vPa), mods=f'offset:{h*512 + j*256}')
        M(i, 2); M(i, 3)
        if i == 0:
            A('v_bfe_u32', vr(vT3), vr(vL), 2, 1)
            A('v_cmp_eq_u32', 'vcc', 0, vr(vT3))
            for k in range(4):
                A('v_cndmask_b32', vr(vPH+k), 0, vr(vPH+k), 'vcc')
                A('v_cndmask_b32', vr(vPH+4+k), vr(vPH+4+k), 0, 'vcc', mods='')
    stamp(A, opt, 5)
    kp, pp, ph = 48, 56, 88
    tmp = 16
    vp = 72
    for k in range(8):
        A('v_cvt_pk_bf16_f32', vr(kp+k), vr(accK+2*k), vr(accK+2*k+1))
    A('v_mfma_f32_32x32x16_bf16', vr(pp, 16), vr(vPH, 4), vr(kp, 4), '0')
    A('v_mfma_f32_32x32x16_bf16', vr(pp, 16), vr(vPH+4, 4), vr(kp+4, 4), vr(pp, 16))
    for k in range(8):
        A('v_cvt_pk_bf16_f32', vr(vp+k), vr(accV+2*k), vr(accV+2*k+1))
    A('ds_write_b128', vr(vVw), vr(vp, 4))
    A('ds_write_b128', vr(vVw), vr(vp+4, 4), mods='offset:4096')
    ones = 44
    for k in range(4): A('v_mov_b32', vr(ones+k), '0x3f803f80')
    softmax_pm(A, pp, ph, tmp)
    for fh in range(2):
        for j in range(2):
            A('ds_write_b128', vr(vEw), vr(ph + 8*fh + 4*j, 4), mods=f'offset:{fh*4096 + j*16}')
    A('s_lshl_b32', sr(sT0), sr(sW), 6)
    A('s_add_u32', sr(sT0), sr(sT0), 8192)
    A('s_add_u32', sr(sKVh), sr(sKVh), sr(sT0))
    A('s_cmp_lg_u32', sr(sW), 0)
    A('s_cbranch_scc1', 'B_NOZW')
    zcheck_wait(A, vZC, vT2, 'B_ZW', 8)
    A.label('B_NOZW')
    A.waitmark('wq', 0)
    A('s_barrier')
    stamp(A, opt, 6)
    fa, fb, aKV, aZ = 48, 64, 16, 20
    for kk in range(4):
        for j in range(2):
            A('ds_read_b64_tr_b16', vr(fa + 4*kk + 2*j, 2), vr(vPr), mods=f'offset:{kk*1024 + j*512}')
        for j in range(2):
            A('ds_read_b64_tr_b16', vr(fb + 4*kk + 2*j, 2), vr(vVr), mods=f'offset:{kk*1024 + j*512}')
    A('v_and_b32', vr(vT3), 1, vr(vL))
    A('v_cmp_eq_u32', 'vcc', 0, vr(vT3))
    A('v_and_b32', vr(vT3), 2, vr(vL))
    A('v_cmp_eq_u32', 's[62:63]', 0, vr(vT3))
    for kk in range(4):
        A('v_mfma_f32_16x16x32_bf16', vr(aKV, 4), vr(fa + 4*kk, 4), vr(fb + 4*kk, 4), '0' if kk == 0 else vr(aKV, 4))
        A('v_mfma_f32_16x16x32_bf16', vr(aZ, 4), vr(fa + 4*kk, 4), vr(ones, 4), '0' if kk == 0 else vr(aZ, 4))
    T_, TZ, TZERO = 114688, 114688 + 4096, 114688 + 4096 + 256
    A('v_mov_b32', vr(vT3), 0)
    A('v_add_u32', vr(vT2), TZERO, vr(vKo))
    A('ds_write_b32', vr(vT2), vr(vT3))
    for r in range(4):
        A('buffer_atomic_add_f32', vr(aKV + r), vr(vKo), sr(sWS, 4), sr(sKVw), mods='offen' + (f' offset:{256*r}' if r else '') + ' sc1')
    A('v_cndmask_b32', vr(aZ), vr(aZ+1), vr(aZ), 'vcc')
    A('v_cndmask_b32', vr(aZ+2), vr(aZ+3), vr(aZ+2), 'vcc')
    A('v_cndmask_b32', vr(aZ), vr(aZ+2), vr(aZ), 's[62:63]')
    A('buffer_atomic_add_f32', vr(aZ), vr(vZo), sr(sWS, 4), sr(sKVh), mods='offen sc1')
    vGW = 72
    A('v_lshlrev_b32', vr(vT2), 4, vr(vT1))
    A('s_lshl_b32', sr(sT0), sr(sHQ), 1)
    A('s_add_u32', sr(sT0), sr(sT0), sr(sHH))
    A('s_lshl_b32', sr(sT1), sr(sT0), 6)
    A('buffer_load_dwordx4', vr(vGW, 4), vr(vT2), sr(sGW, 4), sr(sT1), mods='offen')
    A('buffer_load_dwordx4', vr(vGW+4, 4), vr(vT2), sr(sGW, 4), sr(sT1), mods='offen offset:32')
    stamp(A, opt, 7)
    accQ = 24
    nbuf = 6
    def RQ(n):
        i, t = n >> 2, n & 3
        base = vWa if WQ_AT[i] >= 65536 else vWq
        off = WQ_AT[i] & 65535
        f = vF + 4*(n % nbuf)
        for j in range(2):
            A('ds_read_b64_tr_b16', vr(f + 2*j, 2), vr(base), mods=f'offset:{off + (16*t + 4*j)*128}')
    for n in range(nbuf - 1): RQ(n)
    vZl, vTw, vTZw, vTa, vTZr, vOo, vGo = 104, 105, 106, 107, 108, 109, 110
    sOo, sGo = 40, 41
    fillers = []
    F = lambda *a, **k: fillers.append((a, k))
    F('v_and_b32', vr(vT3), 15, vr(vL))
    F('v_and_b32', vr(vZl), 48, vr(vL))
    F('v_lshrrev_b32', vr(vTZw), 1, vr(vZl))
    F('v_lshl_add_u32', vr(vTw), vr(vT3), 6, vr(vTZw))
    F('s_lshr_b32', sr(sT2), sr(sW), 1)
    F('s_lshl_b32', sr(sT2), sr(sT2), 10)
    F('s_and_b32', sr(sT1), sr(sW), 1)
    F('s_lshl_b32', sr(sT1), sr(sT1), 5)
    F('s_add_u32', sr(sT2), sr(sT2), sr(sT1))
    F('s_add_u32', sr(sT2), sr(sT2), T_)
    F('v_add_u32', vr(vTw), sr(sT2), vr(vTw))
    F('s_lshl_b32', sr(sT2), sr(sW), 5)
    F('s_add_u32', sr(sT2), sr(sT2), TZ)
    F('v_add_u32', vr(vTZw), sr(sT2), vr(vTZw))
    F('v_bfe_u32', vr(vT3), vr(vL), 3, 1)
    F('v_lshlrev_b32', vr(vTa), 9, vr(vT3))
    F('v_bfe_u32', vr(vT3), vr(vL), 4, 1)
    F('v_lshl_add_u32', vr(vTa), vr(vT3), 8, vr(vTa))
    F('v_and_b32', vr(vT3), 3, vr(vL))
    F('v_lshl_add_u32', vr(vTa), vr(vT3), 6, vr(vTa))
    F('v_lshl_add_u32', vr(vTa), vr(vT1), 10, vr(vTa))
    F('s_lshl_b32', sr(sT2), sr(sHH), 11)
    F('s_add_u32', sr(sT2), sr(sT2), T_)
    F('v_add_u32', vr(vTa), sr(sT2), vr(vTa))
    F('v_bfe_u32', vr(vT3), vr(vL), 2, 1)
    F('v_cmp_eq_u32', 'vcc', vr(vT3), vr(vT1))
    F('v_mov_b32', vr(vT3), TZERO)
    F('v_cndmask_b32', vr(vTa), vr(vT3), vr(vTa), 'vcc')
    F('s_lshl_b32', sr(sT2), sr(sHH), 7)
    F('s_add_u32', sr(sT2), sr(sT2), TZ)
    F('v_lshl_add_u32', vr(vTZr), vr(vT1), 6, sr(sT2))
    F('v_lshlrev_b32', vr(vOo), 4, vr(vL))
    F('v_lshlrev_b32', vr(vGo), 2, vr(vT0))
    F('v_lshl_or_b32', vr(vGo), vr(vT1), 31, vr(vGo))
    F('s_lshl_b32', sr(sT2), sr(sRB), 2)
    F('s_and_b32', sr(sT1), sr(sW), 3)
    F('s_add_u32', sr(sT2), sr(sT2), sr(sT1))
    F('s_lshl_b32', sr(sT2), sr(sT2), 4)
    F('s_add_u32', sr(sT2), sr(sT2), sr(sT0))
    F('s_lshl_b32', sr(sOo), sr(sT2), 11)
    F('s_add_u32', sr(sOo), sr(sOo), hex(WS_O))
    F('s_lshl_b32', sr(sGo), sr(sT2), 7)
    F('s_add_u32', sr(sGo), sr(sGo), hex(WS_GP))
    F('s_lshl_b32', sr(sT2), sr(sHQ), 7)
    F('s_add_u32', sr(sT2), sr(sT2), hex(WS_CN + 128*CN_KV))
    F('v_mov_b32', vr(vCn), sr(sT2))
    for n in range(32):
        if n + nbuf - 1 < 32: RQ(n + nbuf - 1)
        A('v_mfma_f32_32x32x16_bf16', vr(accQ, 16), vr(vF + 4*(n % nbuf), 4), ar(4*n, 4), '0' if n == 0 else vr(accQ, 16))
        for _ in range(3):
            if fillers:
                a, k = fillers.pop(0); A(*a, **k)
    assert not fillers
    A('s_waitcnt', 'vmcnt(0)')
    A('s_barrier')
    stamp(A, opt, 8)
    A('s_cmp_lg_u32', sr(sW), 0)
    A('s_cbranch_scc1', 'B_NOSIG')
    signal(A, vCn, vT3)
    A.label('B_NOSIG')
    wo_dma(A, [0, 1, 2, 3], vWoT, sT1, sT2)
    for k in range(8):
        A('v_cvt_pk_bf16_f32', vr(kp+k), vr(accQ+2*k), vr(accQ+2*k+1))
    A('v_mfma_f32_32x32x16_bf16', vr(pp, 16), vr(vPH, 4), vr(kp, 4), '0')
    A('v_mfma_f32_32x32x16_bf16', vr(pp, 16), vr(vPH+4, 4), vr(kp+4, 4), vr(pp, 16))
    g, t0 = 40, 16
    A('v_mov_b32', vr(g), 0)
    A('s_mov_b32', sr(sT2), '0x3f803f80')
    for k in range(8):
        a, b = t0 + 4*(k & 1), t0 + 4*(k & 1) + 2
        A('v_lshlrev_b32', vr(a), 16, vr(vGX+k))
        A('v_and_b32', vr(a+1), '0xffff0000', vr(vGX+k))
        A('v_lshlrev_b32', vr(b), 16, vr(vGW+k))
        A('v_and_b32', vr(b+1), '0xffff0000', vr(vGW+k))
        A('v_pk_mul_f32', vr(a, 2), vr(a, 2), vr(b, 2))
        A('v_cvt_pk_bf16_f32', vr(a), vr(a), vr(a+1))
        A('v_dot2_f32_bf16', vr(g), vr(a), sr(sT2), vr(g))
    A('v_mov_b32', vr(g+1), vr(g))
    A('v_permlane32_swap_b32', vr(g), vr(g+1))
    A('v_add_f32', vr(g), vr(g), vr(g+1))
    A('buffer_store_dword', vr(g), vr(vGo), sr(sWS, 4), sr(sGo), mods='offen sc1')
    softmax_pm(A, pp, ph, tmp)
    stamp(A, opt, 9)
    A('s_cmp_lg_u32', sr(sW), 0)
    A('s_cbranch_scc1', 'B_NOPOLL')
    bound_init(A)
    A.raw('B_POLL:')
    bound_step(A, 'B_NOPOLL')
    raw(A, f'global_load_dword v{vT3}, v{vCn}, s[36:37] sc1', 's_waitcnt vmcnt(0)', f'v_readfirstlane_b32 s{sT0}, v{vT3}',
        f's_cmp_lt_u32 s{sT0}, 16', 's_cbranch_scc1 B_POLL')
    A.label('B_NOPOLL')
    A('s_barrier')
    stamp(A, opt, 10)
    L0, zz = 16, 84
    for r in range(4):
        A('buffer_load_dword', vr(L0 + r), vr(vKo), sr(sWS, 4), sr(sKVw), mods='offen' + (f' offset:{256*r}' if r else '') + ' sc1')
    A('buffer_load_dwordx4', vr(zz, 4), vr(vZl), sr(sWS, 4), sr(sKVh), mods='offen sc1')
    A('s_add_u32', sr(sT2), sr(sRB), CN_O)
    A('s_lshl_b32', sr(sT2), sr(sT2), 7)
    A('s_add_u32', sr(sT2), sr(sT2), hex(WS_CN))
    A('v_mov_b32', vr(vCn), sr(sT2))
    A('v_cvt_pk_bf16_f32', vr(L0), vr(L0), vr(L0+1))
    A('v_cvt_pk_bf16_f32', vr(L0+1), vr(L0+2), vr(L0+3))
    A('ds_write_b64', vr(vTw), vr(L0, 2))
    A('v_cvt_pk_bf16_f32', vr(zz), vr(zz), vr(zz+1))
    A('v_cvt_pk_bf16_f32', vr(zz+1), vr(zz+2), vr(zz+3))
    A('s_mov_b32', 'exec_lo', '0x00010001')
    A('s_mov_b32', 'exec_hi', '0x00010001')
    A('ds_write_b64', vr(vTZw), vr(zz, 2))
    A('s_mov_b64', 'exec', -1)
    A('s_waitcnt', 'lgkmcnt(0)')
    A('s_barrier')
    tA, tZ, num, den = 32, 48, 16, 64
    for j in range(4): A('ds_read_b128', vr(tA + 4*j, 4), vr(vTa), mods=f'offset:{16*j}')
    for j in range(4): A('ds_read_b128', vr(tZ + 4*j, 4), vr(vTZr), mods=f'offset:{16*j}')
    for j in range(4):
        A('v_mfma_f32_32x32x16_bf16', vr(num, 16), vr(tA + 4*j, 4), vr(ph + 4*j, 4), '0' if j == 0 else vr(num, 16))
    for k in range(16):
        d = den + (k & 1)
        A('v_dot2_f32_bf16', vr(d), vr(ph + k), vr(tZ + k), '0' if k < 2 else vr(d))
    A('v_add_f32', vr(den), vr(den), vr(den+1))
    A('v_add_f32', vr(den), f2u(1e-6), vr(den))
    A('v_rcp_f32', vr(den), vr(den))
    o = 68
    for k in range(8):
        A('v_pk_mul_f32', vr(num+2*k, 2), vr(num+2*k, 2), vr(den, 2), mods='op_sel_hi:[1,0]')
        A('v_cvt_pk_bf16_f32', vr(o+k), vr(num+2*k), vr(num+2*k+1))
        if k == 3: A('buffer_store_dwordx4', vr(o, 4), vr(vOo), sr(sWS, 4), sr(sOo), mods='offen sc1')
        if k == 7: A('buffer_store_dwordx4', vr(o+4, 4), vr(vOo), sr(sWS, 4), sr(sOo), mods='offen offset:1024 sc1')
    A('s_branch', 'TAIL')
```

```python
from common2 import *

def gen_tail(A, opt):
    sW = 4
    sT0, sT1, sT2, sRW, sCW, sKH = 62, 63, 64, 65, 98, 99
    vL, vT0, vT1, vT2, vT3 = 1, 2, 3, 4, 5
    vLin, vAo, vG, vB, vA_, vAT, vOut, vEx = 6, 7, 8, 9, 10, 11, 12, 13
    A.label('TAIL')
    A.fence()
    srd(A, sOUT_, 32, 2048*1024)
    A('s_and_b32', sr(sRW), sr(sW), 1)
    A('s_bfe_u32', sr(sCW), sr(sW), '0x10001')
    A('s_lshr_b32', sr(sKH), sr(sW), 2)
    A('v_lshlrev_b32', vr(vLin), 4, vr(vL))
    wo_addr(A, vAo, vT0, vT1)
    A('v_lshl_add_u32', vr(vAo), vr(vT1), 12, vr(vT0))
    A('v_and_b32', vr(vT0), 31, vr(vL))
    A('v_lshrrev_b32', vr(vT1), 5, vr(vL))
    A('v_lshlrev_b32', vr(vG), 2, vr(vT0))
    A('v_lshl_add_u32', vr(vG), vr(vT1), 10, vr(vG))
    A('s_lshl_b32', sr(sT0), sr(sRW), 1)
    A('s_add_u32', sr(sT0), sr(sT0), sr(sKH))
    A('s_lshl_b32', sr(sT0), sr(sT0), 14)
    A('s_add_u32', sr(sT0), sr(sT0), T_O)
    A('v_add_u32', vr(vB), sr(sT0), vr(vLin))
    vR, vC = 14, 15
    A('v_bfe_u32', vr(vR), vr(vL), 2, 2)
    A('v_and_b32', vr(vC), 3, vr(vL))
    A('v_lshlrev_b32', vr(vC), 3, vr(vC))
    A('v_bfe_u32', vr(vT2), vr(vL), 4, 1)
    A('v_lshl_add_u32', vr(vC), vr(vT2), 5, vr(vC))
    A('v_bfe_u32', vr(vT2), vr(vL), 3, 1)
    A('v_lshl_add_u32', vr(vC), vr(vT2), 6, vr(vC))
    A('s_lshl_b32', sr(sT2), sr(sCW), 6)
    A('v_xor_b32', vr(vA_), sr(sT2), vr(vC))
    A('v_lshl_add_u32', vr(vT2), vr(vT1), 4, vr(vR))
    A('v_lshl_add_u32', vr(vA_), vr(vT2), 7, vr(vA_))
    A('s_lshl_b32', sr(sT2), sr(sKH), 15)
    A('v_add_u32', vr(vA_), sr(sT2), vr(vA_))
    A('s_lshl_b32', sr(sT2), sr(sRW), 6)
    A('v_xor_b32', vr(vAT), sr(sT2), vr(vC))
    A('v_lshl_add_u32', vr(vT2), vr(vT1), 2, vr(vR))
    A('v_lshl_add_u32', vr(vAT), vr(vT2), 7, vr(vAT))
    A('s_lshl_b32', sr(sT2), sr(sCW), 1)
    A('s_add_u32', sr(sT2), sr(sT2), sr(sKH))
    A('s_lshl_b32', sr(sT1), sr(sT2), 11)
    A('s_add_u32', sr(sT1), sr(sT1), T_AT)
    A('v_add_u32', vr(vAT), sr(sT1), vr(vAT))
    sOo, sOs, sOm, sGs, sAs = 40, 41, 42, 43, 46
    A('v_lshlrev_b32', vr(vOut), 10, vr(vT0))
    A('v_lshl_add_u32', vr(vOut), vr(vT1), 4, vr(vOut))
    A('s_lshl_b32', sr(sT0), sr(sRT_), 1)
    A('s_add_u32', sr(sT0), sr(sT0), sr(sRW))
    A('s_lshl_b32', sr(sOo), sr(sT0), 15)
    A('s_lshl_b32', sr(sT1), sr(sCT_), 2)
    A('s_add_u32', sr(sT1), sr(sT1), sr(sT2))
    A('s_lshl_b32', sr(sT1), sr(sT1), 5)
    A('s_lshl_b32', sr(sGs), sr(sT0), 11)
    A('s_add_u32', sr(sGs), sr(sGs), hex(WS_GP))
    A('s_lshl_b32', sr(sT2), sr(sKH), 4)
    A('s_add_u32', sr(sT2), sr(sT2), sr(sCW))
    A('s_lshl_b32', sr(sT2), sr(sT2), 10)
    A('s_add_u32', sr(sOs), sr(sOo), sr(sT2))
    A('s_add_u32', sr(sOs), sr(sOs), hex(WS_O))
    A('s_add_u32', sr(sOo), sr(sOo), sr(sT1))
    A('s_lshl_b32', sr(sOm), sr(sRW), 15)
    A('s_add_u32', sr(sOm), sr(sOm), sr(sT2))
    A('s_add_u32', sr(sOm), sr(sOm), T_O)
    A('s_lshl_b32', sr(sAs), sr(sCT_), 3)
    A('s_add_u32', sr(sAs), sr(sAs), sr(sW))
    A('s_lshl_b32', sr(sAs), sr(sAs), 15)
    A('s_lshl_b32', sr(sT2), sr(sRT_), 7)
    A('s_add_u32', sr(sAs), sr(sAs), sr(sT2))
    A('s_lshl_b32', sr(sT2), sr(sW), 11)
    A('s_add_u32', sr(sT2), sr(sT2), T_EX)
    A('v_add_u32', vr(vEx), sr(sT2), vr(vLin))
    A('s_lshr_b32', sr(sT0), sr(sRT_), 1)
    A('s_add_u32', sr(sT0), sr(sT0), CN_O)
    A('s_add_u32', sr(sT1), sr(sCT_), CN_A)
    A('v_mov_b32', vr(vT2), sr(sT1))
    A('v_writelane_b32', vr(vT2), sr(sT0), 0)
    A('v_lshlrev_b32', vr(vT2), 7, vr(vT2))
    A('v_add_u32', vr(vT2), hex(WS_CN), vr(vT2))
    A('s_waitcnt', 'vmcnt(0) lgkmcnt(0)')
    A('s_barrier')
    stamp(A, opt, 11)
    A('s_cmp_lg_u32', sr(sW), 0)
    A('s_cbranch_scc1', 'T_NOSIG')
    signal(A, vCN_, vT3)
    A.label('T_NOSIG')
    for s in range(16):
        P, j = s >> 1, s & 1
        for jj in range(2):
            A('ds_read_b64_tr_b16', ar(4*s + 2*jj, 2), vr(vA_), mods=f'offset:{(32*P + 8*j + 4*jj)*128}')
    A('s_cmp_lg_u32', sr(sW), 0)
    A('s_cbranch_scc1', 'T_NOPOLL')
    A('s_mov_b64', 'exec', 3)
    bound_init(A)
    A.label('T_POLL')
    bound_step(A, 'T_POLX')
    A('global_load_dword', vr(vT3), vr(vT2), 's[36:37]', mods='sc1')
    A('s_waitcnt', 'vmcnt(0)')
    A('v_readlane_b32', sr(sT0), vr(vT3), 0)
    A('v_readlane_b32', sr(sT1), vr(vT3), 1)
    A('s_lshl_b32', sr(sT0), sr(sT0), 1)
    A('s_min_u32', sr(sT0), sr(sT0), sr(sT1))
    A('s_cmp_lt_u32', sr(sT0), 16)
    A('s_cbranch_scc1', 'T_POLL')
    A.label('T_POLX')
    A('s_mov_b64', 'exec', -1)
    A.label('T_NOPOLL')
    A('s_barrier')
    stamp(A, opt, 12)
    vGP = 16
    def odma(i):
        if i & 1 == 0:
            A('s_add_u32', 'm0', sr(sOm), i*2048)
            if i: A('s_add_u32', sr(sOs), sr(sOs), 4096)
        A('buffer_load_dwordx4', vr(vLin), sr(sWS_, 4), sr(sOs), mods='offen' + (' offset:2048' if i & 1 else '') + ' sc1 lds')
        A.mark(f'o{i}')
    odma(0); odma(1)
    for p in range(8):
        A('buffer_load_dword', vr(vGP + p), vr(vG), sr(sWS_, 4), sr(sGs), mods='offen' + (f' offset:{128*p}' if p else '') + ' sc1')
    A('s_lshl_b32', sr(sT2), sr(sW), 10)
    A('s_add_u32', 'm0', sr(sT2), T_AT)
    A('buffer_load_dwordx4', vr(vAo), sr(sWS_, 4), sr(sAs), mods='offen sc1 lds')
    for i in range(2, 8): odma(i)
    acc, vFb, vAf, vGA = 32, 64, 24, 48
    vg, vom = 28, 30
    for q in range(4):
        A.waitmark(f'o{2*q+1}')
        A('s_barrier')
        if q == 0: stamp(A, opt, 13)
        for s in range(4*q, 4*q + 4): A('ds_read_b128', vr(vFb + 4*s, 4), vr(vB), mods=f'offset:{s*1024}')
        if q == 1:
            for k in range(2): A('ds_read_b64_tr_b16', vr(vAf + 2*k, 2), vr(vAT), mods=f'offset:{k*1024}')
        for s in range(4*q, 4*q + 4):
            A('v_mfma_f32_32x32x16_bf16', vr(acc, 16), ar(4*s, 4), vr(vFb + 4*s, 4), '0' if s == 0 else vr(acc, 16))
        if q == 1:
            A('v_add_f32', vr(vGP), vr(vGP), vr(vGP+1))
            A('v_add_f32', vr(vGP+2), vr(vGP+2), vr(vGP+3))
            A('v_add_f32', vr(vGP+4), vr(vGP+4), vr(vGP+5))
            A('v_add_f32', vr(vGP+6), vr(vGP+6), vr(vGP+7))
            A('v_add_f32', vr(vGP), vr(vGP), vr(vGP+2))
            A('v_add_f32', vr(vGP+4), vr(vGP+4), vr(vGP+6))
            A('v_add_f32', vr(vGP), vr(vGP), vr(vGP+4))
            A('v_mov_b32', vr(vGP+1), vr(vGP))
            A('v_permlane32_swap_b32', vr(vGP), vr(vGP+1))
            A('v_add_f32', vr(vGP), vr(vGP), vr(vGP+1))
            A('v_cvt_pk_bf16_f32', vr(vGP), vr(vGP), vr(vGP))
            A('v_and_b32', vr(vGP), '0xffff0000', vr(vGP))
            A('v_mul_f32', vr(vGP), f2u(-1.4426950408889634), vr(vGP))
            A('v_exp_f32', vr(vGP), vr(vGP))
            A('v_add_f32', vr(vGP), 1.0, vr(vGP))
            A('v_rcp_f32', vr(vGP), vr(vGP))
            A('v_cvt_pk_bf16_f32', vr(vg), vr(vGP), vr(vGP))
            A('v_and_b32', vr(vg), '0xffff0000', vr(vg))
            A('v_sub_f32', vr(vom), 1.0, vr(vg))
            A('v_cvt_pk_bf16_f32', vr(vom), vr(vom), vr(vom))
            A('v_and_b32', vr(vom), '0xffff0000', vr(vom))
        if q == 2:
            for k in range(4):
                A('v_lshlrev_b32', vr(vGA+2*k), 16, vr(vAf+k))
                A('v_and_b32', vr(vGA+2*k+1), '0xffff0000', vr(vAf+k))
                A('v_mul_f32', vr(vGA+2*k), vr(vGA+2*k), vr(vg))
                A('v_mul_f32', vr(vGA+2*k+1), vr(vGA+2*k+1), vr(vg))
    A('v_xor_b32', vr(vT2), 8192, vr(vEx))
    A('s_cmp_eq_u32', sr(sKH), 0)
    A('s_cbranch_scc1', 'T_K0')
    A('ds_write_b128', vr(vEx), vr(acc, 4))
    A('ds_write_b128', vr(vEx), vr(acc+4, 4), mods='offset:1024')
    for k in range(4): A('v_pk_fma_f32', vr(vGA+2*k, 2), vr(acc+8+2*k, 2), vr(vom, 2), vr(vGA+2*k, 2), mods='op_sel_hi:[1,0,1]')
    A('s_branch', 'T_KX')
    A.label('T_K0')
    A.nop(12)
    A('ds_write_b128', vr(vEx), vr(acc+8, 4))
    A('ds_write_b128', vr(vEx), vr(acc+12, 4), mods='offset:1024')
    for k in range(4): A('v_pk_fma_f32', vr(vGA+2*k, 2), vr(acc+2*k, 2), vr(vom, 2), vr(vGA+2*k, 2), mods='op_sel_hi:[1,0,1]')
    A.label('T_KX')
    A('s_waitcnt', 'lgkmcnt(0)')
    A('s_barrier')
    ex = 64
    A('ds_read_b128', vr(ex, 4), vr(vT2))
    A('ds_read_b128', vr(ex+4, 4), vr(vT2), mods='offset:1024')
    P = 56
    for k in range(4):
        A('v_pk_fma_f32', vr(vGA+2*k, 2), vr(ex+2*k, 2), vr(vom, 2), vr(vGA+2*k, 2), mods='op_sel_hi:[1,0,1]')
        A('v_cvt_pk_bf16_f32', vr(P+k), vr(vGA+2*k), vr(vGA+2*k+1))
    A('v_permlane32_swap_b32', vr(P), vr(P+2))
    A('v_permlane32_swap_b32', vr(P+1), vr(P+3))
    A('buffer_store_dwordx4', vr(P, 4), vr(vOut), sr(sOUT_, 4), sr(sOo), mods='offen' + opt.get('wt2', ''))
    if opt.get('stamps'):
        A('s_waitcnt', 'vmcnt(0)')
        stamp(A, opt, 14)
        stamps_flush(A, opt, 15, sWS_, sW, 0)
```

```python
import sys
from common2 import *
import gen_b2, gen_a2, gen_tail
from gen import header, KNAME
def gen_f(opt):
    A = Asm()
    SAFE[0] = bool(opt.get('safe'))
    if opt.get('rt'): stamp(A, opt, 15)
    A('s_cmp_ge_u32', 's2', 256)
    A('s_cbranch_scc1', 'F_END')
    A('s_load_dwordx16', 's[8:23]', 's[0:1]', 0)
    A('s_load_dwordx8', 's[24:31]', 's[0:1]', 64)
    A('s_load_dwordx4', 's[32:35]', 's[0:1]', 96)
    A('s_load_dwordx2', 's[36:37]', 's[0:1]', 112)
    A('v_lshrrev_b32', 'v2', 6, 'v0')
    A('v_and_b32', 'v1', 63, 'v0')
    A('v_readfirstlane_b32', 's4', 'v2')
    A('s_cmp_ge_u32', 's2', 128)
    A('s_cbranch_scc1', 'A_ROLE')
    gen_b2.gen_b(A, opt)
    A.label('A_ROLE')
    A.fence()
    gen_a2.gen_a(A, opt)
    gen_tail.gen_tail(A, opt)
    A.label('F_END')
    A('s_endpgm')
    return A
def generate(opt):
    txt = header()
    body = '.amdgcn_target "amdgcn-amd-amdhsa--gfx950"\n.text\n'
    A = gen_f(opt)
    name = KNAME + '_kernel'
    if opt.get('list'):
        name = 'mix_f_kernel'
        txt += f'; @launch kernel={name} grid=(256,1,1) block=(512,1,1) lds=163840\n'
    else:
        txt += '; @launch grid=(256,1,1) block=(512,1,1) lds=163840\n'
    body += khead(name) + A.finalize() + kdesc(name, 256, 128)
    print('stats', A.stats, file=sys.stderr)
    return txt + body
if __name__ == '__main__':
    opt = {}
    out = f'cdna_kernels/{KNAME}.s'
    for a in sys.argv[1:]:
        if a.startswith('out='): out = a[4:]
        elif '=' in a:
            k, v = a.split('=', 1); opt[k] = eval(v)
        else: opt[a] = True
    open(out, 'w').write(generate(opt))
    print('wrote', out)
```

```python
from common import *
WS_AT = 0x000000
WS_O  = 0x200000
WS_KV = 0x400000
WS_CN = 0x420000
WS_GP = 0x520000
CN_KV, CN_O, CN_A = 0, 8, 24
T_WO, T_O, T_AT, T_EX = 0, 65536, 131072, 147456
vCN_ = 126
sWS_, sWO_, sOUT_ = 48, 52, 56
sRT_, sCT_ = 38, 39

def tail_coords(A, t0, t1):
    A('s_and_b32', sr(t0), 's2', 7)
    A('s_lshr_b32', sr(t1), 's2', 3)
    A('s_lshr_b32', sr(sCT_), sr(t1), 2)
    A('s_and_b32', sr(t1), sr(t1), 3)
    A('s_lshl_b32', sr(sRT_), sr(t0), 2)
    A('s_add_u32', sr(sRT_), sr(sRT_), sr(t1))
    A('s_lshl_b32', 's22', 's4', 13)
    A('s_lshl_b32', sr(t1), sr(sCT_), 7)
    A('s_add_u32', 's22', 's22', sr(t1))
    A('s_lshl_b32', 's23', 's4', 10)

def wo_addr(A, vd, vt0, vt1):
    A('v_lshrrev_b32', vr(vt0), 2, 'v1')
    A('v_and_b32', vr(vt0), 4, vr(vt0))
    A('v_and_b32', vr(vt1), 7, 'v1')
    A('v_xor_b32', vr(vt0), vr(vt0), vr(vt1))
    A('v_lshlrev_b32', vr(vt0), 4, vr(vt0))
    A('v_lshrrev_b32', vr(vt1), 3, 'v1')
    A('v_lshl_add_u32', vr(vd), vr(vt1), 10, vr(vt0))

def wo_dma(A, chunks, vWo, t0, t1):
    for c in chunks:
        A('s_add_u32', 'm0', 's23', T_WO + c*8192)
        A('s_add_u32', sr(t0), 's22', c*65536)
        A('buffer_load_dwordx4', vr(vWo), sr(sWO_, 4), sr(t0), mods='offen lds')

def raw(A, *lines):
    for l in lines: A.raw('  ' + l)

def signal(A, voff, vone):
    raw(A, f'v_mov_b32 v{vone}, 1', 's_mov_b64 exec, 1', f'global_atomic_add v{voff}, v{vone}, s[36:37] sc1', 's_mov_b64 exec, -1')

def zcheck_issue(A, vd, vt):
    raw(A, f'v_lshlrev_b32 v{vt}, 5, v1', 's_mov_b64 exec, 0xff', f'global_load_dword v{vd}, v{vt}, s[34:35] sc1', 's_mov_b64 exec, -1')

def zcheck_wait(A, vd, vt, lab, vm):
    raw(A, f's_waitcnt vmcnt({vm})', 's_mov_b64 exec, 0xff', f'v_cmp_ne_u32 vcc, 16, v{vd}', f's_cbranch_vccz {lab}_OK', f'v_lshlrev_b32 v{vt}, 5, v1')
    bound_init(A)
    A.raw(f'{lab}_L:')
    bound_step(A, f'{lab}_OK')
    raw(A, f'global_load_dword v{vd}, v{vt}, s[34:35] sc1', 's_waitcnt vmcnt(0)', f'v_cmp_ne_u32 vcc, 16, v{vd}', f's_cbranch_vccnz {lab}_L')
    A.raw(f'{lab}_OK:')
    raw(A, 's_mov_b64 exec, -1')

SAFE = [False]
def bound_init(A):
    if SAFE[0]: raw(A, 's_mov_b32 s47, 0')
def bound_step(A, out):
    if SAFE[0]: raw(A, 's_add_u32 s47, s47, 1', 's_cmp_gt_u32 s47, 20000', f's_cbranch_scc1 {out}')
```

```python
from common2 import *

E_ = 131072
def softmax_pm(A, p, ph, tmp, fill=None):
    mx, mn = tmp, tmp + 2
    e = tmp + 4
    sm = tmp + 20
    A('v_max3_f32', vr(mx), vr(p), vr(p+1), vr(p+2))
    A('v_min3_f32', vr(mn), vr(p), vr(p+1), vr(p+2))
    A('v_max3_f32', vr(mx+1), vr(p+3), vr(p+4), vr(p+5))
    A('v_min3_f32', vr(mn+1), vr(p+3), vr(p+4), vr(p+5))
    for k in (6, 10):
        A('v_max3_f32', vr(mx), vr(mx), vr(p+k), vr(p+k+1))
        A('v_min3_f32', vr(mn), vr(mn), vr(p+k), vr(p+k+1))
        A('v_max3_f32', vr(mx+1), vr(mx+1), vr(p+k+2), vr(p+k+3))
        A('v_min3_f32', vr(mn+1), vr(mn+1), vr(p+k+2), vr(p+k+3))
    A('v_max3_f32', vr(mx), vr(mx), vr(p+14), vr(p+15))
    A('v_min3_f32', vr(mn), vr(mn), vr(p+14), vr(p+15))
    A('v_max_f32', vr(mx), vr(mx), vr(mx+1))
    A('v_min_f32', vr(mn), vr(mn), vr(mn+1))
    A('v_mul_f32', vr(mx), 's61', vr(mx))
    A('v_mul_f32', vr(mn), 's60', vr(mn))
    for sgn in range(2):
        b = mx if sgn == 0 else mn
        d = e if sgn == 0 else p
        sel = 'op_sel_hi:[1,0,0]' if sgn == 0 else 'op_sel:[0,1,0] op_sel_hi:[1,1,0]'
        for k in range(8):
            A('v_pk_fma_f32', vr(d+2*k, 2), vr(p+2*k, 2), 's[60:61]', vr(b, 2), mods=sel)
        for k in range(16):
            A('v_exp_f32', vr(d+k), vr(d+k))
        s8 = ph + 8*sgn
        for k in range(4):
            A('v_pk_add_f32', vr(s8+2*k, 2), vr(d+4*k, 2), vr(d+4*k+2, 2))
        A('v_pk_add_f32', vr(s8, 2), vr(s8, 2), vr(s8+2, 2))
        A('v_pk_add_f32', vr(s8+4, 2), vr(s8+4, 2), vr(s8+6, 2))
        A('v_pk_add_f32', vr(s8, 2), vr(s8, 2), vr(s8+4, 2))
        A('v_add_f32', vr(sm), vr(s8), vr(s8+1))
        A('v_rcp_f32', vr(sm), vr(sm))
        for k in range(8):
            A('v_pk_mul_f32', vr(d+2*k, 2), vr(d+2*k, 2), vr(sm, 2), mods='op_sel_hi:[1,0]')
        for k in range(8):
            A('v_cvt_pk_bf16_f32', vr(s8+k), vr(d+2*k), vr(d+2*k+1))

def gen_b(A, opt):
    sW = 4
    sU, sWQ, sWS, sPH, sGW = 40, 44, sWS_, 52, 56
    sRB, sHQ, sKVh, sKVw, sT0, sT1, sT2, sMx, sMw, sXb, sWb, sHH = 5, 6, 7, 3, 62, 63, 64, 65, 98, 99, 100, 101
    vL = 1
    vT0, vT1, vT2, vT3 = 2, 3, 4, 5
    vXo0, vXo1, vWo, vWoT = 6, 7, 8, 9
    vXa = 10
    vWa, vWq = 14, 15
    accK, accV = 16, 32
    vF = 48
    vPH = 80
    vGX = 112
    vZC = 127
    A('s_and_b32', sr(sT0), 's2', 7)
    A('s_lshr_b32', sr(sT1), 's2', 3)
    A('s_lshr_b32', sr(sRB), sr(sT0), 1)
    A('s_lshl_b32', sr(sRB), sr(sRB), 2)
    A('s_and_b32', sr(sT2), sr(sT1), 3)
    A('s_add_u32', sr(sRB), sr(sRB), sr(sT2))
    A('s_and_b32', sr(sT0), sr(sT0), 1)
    A('s_lshr_b32', sr(sT1), sr(sT1), 2)
    A('s_lshl_b32', sr(sHQ), sr(sT0), 2)
    A('s_add_u32', sr(sHQ), sr(sHQ), sr(sT1))
    A('s_lshr_b32', sr(sHH), sr(sW), 2)
    A('v_lshrrev_b32', vr(vT0), 3, vr(vL))
    A('v_and_b32', vr(vT1), 7, vr(vL))
    A('v_lshrrev_b32', vr(vT2), 4, vr(vL))
    A('v_xor_b32', vr(vXo0), vr(vT1), vr(vT2))
    A('v_lshlrev_b32', vr(vXo0), 4, vr(vXo0))
    A('v_lshl_add_u32', vr(vXo0), vr(vT0), 10, vr(vXo0))
    A('v_xor_b32', vr(vXo1), 64, vr(vXo0))
    A('v_add_u32', vr(vXo1), 8192, vr(vXo1))
    A('v_and_b32', vr(vT2), 1, vr(vT2))
    A('v_lshlrev_b32', vr(vT2), 2, vr(vT2))
    A('v_xor_b32', vr(vT1), vr(vT1), vr(vT2))
    A('v_lshlrev_b32', vr(vT1), 4, vr(vT1))
    A('v_mul_u32_u24', vr(vWo), 3072, vr(vT0))
    A('v_add_u32', vr(vWo), vr(vWo), vr(vT1))
    A('v_lshl_add_u32', vr(vWoT), vr(vT0), 10, vr(vT1))
    A('s_lshl_b32', sr(sXb), sr(sRB), 3)
    A('s_add_u32', sr(sXb), sr(sXb), sr(sW))
    A('s_lshl_b32', sr(sXb), sr(sXb), 14)
    A('s_mul_i32', sr(sWb), sr(sW), 8*3072)
    A('s_lshl_b32', sr(sT0), sr(sHQ), 7)
    A('s_add_u32', sr(sWb), sr(sWb), sr(sT0))
    A('s_lshl_b32', sr(sMx), sr(sW), 11)
    A('s_lshl_b32', sr(sMw), sr(sW), 10)
    A('s_mul_i32', sr(sKVh), sr(sHQ), KVB)
    A('s_add_u32', sr(sKVh), sr(sKVh), hex(WS_KV))
    A('s_mul_i32', sr(sT0), sr(sRB), KVB // 16)
    A('s_add_u32', sr(sT0), sr(sT0), sr(sKVh))
    A('s_lshl_b32', sr(sT1), 's2', 7)
    A('s_add_u32', sr(sT1), sr(sT1), hex(WS_CN))
    vZ = 16
    A('v_lshl_add_u32', vr(vT2), 'v0', 4, sr(sT0))
    A('v_mov_b32', vr(vT3), sr(sT1))
    A('v_cmp_gt_u32', 'vcc', 34, 'v0')
    A('v_cndmask_b32', vr(vT2), vr(vT3), vr(vT2), 'vcc')
    A('v_cmp_gt_u32', 'vcc', 35, 'v0')
    A('v_mov_b32', vr(vT3), '0x80000000')
    A('v_cndmask_b32', vr(vT2), vr(vT3), vr(vT2), 'vcc')
    for k in range(4): A('v_mov_b32', vr(vZ+k), 0)
    A('s_waitcnt', 'lgkmcnt(0)')
    srd(A, sU, 8, 2048*1024)
    srd(A, sWQ, 24, 512*3072)
    srd(A, sWS, 36, WS_SZ)
    WQ_AT = [0, 8192, 65536, 65536 + 8192, 16384, 16384 + 8192, 65536 + 16384, 65536 + 16384 + 8192]
    def piece(i, k):
        sl = (i & 3) * 16384
        if opt.get('xnodma') and i >= 4 and (opt['xnodma'] == 1 or k >= 2):
            if k == 3: A.mark(f'st{i}'); A.mark('wq')
            return
        if i < 8:
            if k == 0:
                A('s_add_u32', 'm0', sr(sMx), sl)
                A('s_add_u32', sr(sT0), sr(sXb), 128*i)
                A('buffer_load_dwordx4', vr(vXo0), sr(sU, 4), sr(sT0), mods='offen lds')
            elif k == 1:
                A('s_add_u32', 'm0', sr(sMx), sl + 1024)
                A('s_add_u32', sr(sT0), sr(sXb), 128*i)
                A('buffer_load_dwordx4', vr(vXo1), sr(sU, 4), sr(sT0), mods='offen lds')
            else:
                A('s_add_u32', 'm0', sr(sMw), 65536 + sl + (k - 2)*8192 - (k - 1)*1024)
                A('s_add_u32', sr(sT0), sr(sWb), 64*3072*i)
                A('buffer_load_dwordx4', vr(vWo), sr(sWQ, 4), sr(sT0), mods=f'offen offset:{(k - 1)*1024} lds')
            if k == 3: A.mark(f'st{i}')
        elif i < 10:
            j = 4*(i - 8) + k
            A('s_add_u32', 'm0', sr(sMw), WQ_AT[j])
            A('s_add_u32', sr(sT0), sr(sWb), 64*3072*j)
            A('buffer_load_dwordx4', vr(vWo), sr(sWQ, 4), sr(sT0), mods='offen lds')
            if j == 7: A.mark('wq')
        elif k < 2:
            wo_dma(A, [4 + 2*(i - 10) + k], vWoT, sT0, sT1)
    def stage(i):
        for k in range(4): piece(i, k)
    A('buffer_store_dwordx4', vr(vZ, 4), vr(vT2), sr(sWS, 4), 0, mods='offen sc1')
    A.mark('zero')
    stage(0)
    if not opt.get('nobar0'): A('s_barrier')
    stamp(A, opt, 0)
    srd(A, sPH, 26, 32*512)
    A('v_lshlrev_b32', vr(vT0), 2, vr(vL))
    A('s_lshl_b32', sr(sT0), sr(sHQ), 3)
    A('s_add_u32', sr(sT0), sr(sT0), sr(sW))
    A('s_lshl_b32', sr(sT0), sr(sT0), 8)
    A('s_lshl_b32', sr(sT1), sr(sW), 8)
    A('s_add_u32', 'm0', sr(sT1), E_)
    A('buffer_load_dword', vr(vT0), sr(sPH, 4), sr(sT0), mods='offen lds')
    stage(1)
    stage(2)
    stage(3)
    srd(A, sWO_, 28, 512*1024)
    srd(A, sGW, 30, 1024)
    tail_coords(A, sT0, sT1)
    A('v_lshrrev_b32', vr(vT1), 5, vr(vL))
    A('v_and_b32', vr(vT0), 31, vr(vL))
    A('v_bfe_u32', vr(vT2), vr(vL), 1, 3)
    A('v_xor_b32', vr(vT2), vr(vT2), vr(vT1))
    A('v_lshlrev_b32', vr(vT2), 4, vr(vT2))
    A('v_lshl_add_u32', vr(vXa), vr(vT0), 7, vr(vT2))
    A('s_and_b32', sr(sT0), sr(sW), 3)
    A('s_lshl_b32', sr(sT2), sr(sT0), 12)
    A('v_add_u32', vr(vXa), sr(sT2), vr(vXa))
    for t in range(1, 4):
        A('v_xor_b32', vr(vXa+t), 32*t, vr(vXa))
    vR, vC = 104, 105
    A('v_bfe_u32', vr(vR), vr(vL), 2, 2)
    A('v_and_b32', vr(vC), 3, vr(vL))
    A('v_lshlrev_b32', vr(vC), 3, vr(vC))
    A('v_bfe_u32', vr(vT2), vr(vL), 4, 1)
    A('v_lshl_add_u32', vr(vC), vr(vT2), 5, vr(vC))
    A('v_bfe_u32', vr(vT3), vr(vL), 3, 1)
    A('v_lshl_add_u32', vr(vC), vr(vT3), 6, vr(vC))
    A('s_lshl_b32', sr(sT2), sr(sHH), 6)
    A('v_xor_b32', vr(vWq), sr(sT2), vr(vC))
    A('v_lshl_add_u32', vr(vT3), vr(vT1), 3, vr(vR))
    A('v_lshl_add_u32', vr(vWq), vr(vT3), 7, vr(vWq))
    A('v_add_u32', vr(vWa), 65536, vr(vWq))
    vPa, vGa = 106, 107
    A('v_lshl_add_u32', vr(vT3), vr(vT1), 2, vr(vR))
    A('v_lshlrev_b32', vr(vPa), 5, vr(vT3))
    A('v_lshl_add_u32', vr(vPa), vr(vT2), 4, vr(vPa))
    A('v_bfe_u32', vr(vT3), vr(vL), 1, 1)
    A('v_lshl_add_u32', vr(vPa), vr(vT3), 3, vr(vPa))
    A('s_lshl_b32', sr(sT2), sr(sHH), 10)
    A('s_add_u32', sr(sT2), sr(sT2), E_)
    A('v_add_u32', vr(vPa), sr(sT2), vr(vPa))
    A('s_lshl_b32', sr(sT2), sr(sHH), 6)
    A('v_xor_b32', vr(vGa), sr(sT2), vr(vXa))
    A('v_xor_b32', vr(vGa+1), 32, vr(vGa))
    A('s_mov_b32', 's60', f2u(1.4426950408889634))
    A('s_mov_b32', 's61', f2u(-1.4426950408889634))
    vVw, vEw = 110, 111
    A('s_lshl_b32', sr(sT2), sr(sT0), 10)
    A('v_lshl_add_u32', vr(vT3), vr(vT0), 5, sr(sT2))
    A('v_lshl_add_u32', vr(vVw), vr(vT1), 4, vr(vT3))
    A('s_lshl_b32', sr(sT2), sr(sHH), 13)
    A('s_add_u32', sr(sT2), sr(sT2), 98304)
    A('v_add_u32', vr(vVw), sr(sT2), vr(vVw))
    A('v_lshl_add_u32', vr(vEw), vr(vT1), 13, vr(vT3))
    A('s_lshl_b32', sr(sT2), sr(sHH), 14)
    A('s_add_u32', sr(sT2), sr(sT2), E_)
    A('v_add_u32', vr(vEw), sr(sT2), vr(vEw))
    vPr, vVr, vKo, vZo, vCn = 124, 125, 122, 123, vCN_
    A('s_lshl_b32', sr(sT0), sr(sW), 12)
    A('s_add_u32', sr(sT0), sr(sT0), E_)
    A('v_lshl_add_u32', vr(vPr), vr(vL), 3, sr(sT0))
    A('s_lshr_b32', sr(sT0), sr(sW), 1)
    A('s_lshl_b32', sr(sT0), sr(sT0), 12)
    A('s_add_u32', sr(sT0), sr(sT0), 98304)
    A('v_lshl_add_u32', vr(vVr), vr(vL), 3, sr(sT0))
    A('v_lshlrev_b32', vr(vKo), 2, vr(vL))
    A('v_and_b32', vr(vT3), 15, vr(vL))
    A('v_and_b32', vr(vT2), 48, vr(vL))
    A('v_lshl_add_u32', vr(vT2), vr(vT3), 2, vr(vT2))
    A('v_cmp_gt_u32', 'vcc', 4, vr(vT3))
    A('v_mov_b32', vr(vZo), '0x80000000')
    A('v_cndmask_b32', vr(vZo), vr(vZo), vr(vT2), 'vcc')
    A('s_add_u32', sr(sKVw), sr(sKVh), sr(sMw))
    A.waitmark('zero')
    A('s_cmp_lg_u32', sr(sW), 0)
    A('s_cbranch_scc1', 'B_NOZ')
    A('s_lshl_b32', sr(sT0), sr(sHQ), 5)
    raw(A, f'v_mov_b32 v{vT2}, s{sT0}', f'v_mov_b32 v{vT3}, 1', 's_mov_b64 exec, 1', f'global_atomic_add v{vT2}, v{vT3}, s[34:35] sc1', 's_mov_b64 exec, -1')
    A.label('B_NOZ')
    def Rl(i, t):
        sl = (i & 3) * 16384
        if opt.get('xnord') and i: return [lambda: None]*5
        L = [lambda: A('ds_read_b128', ar(16*i + 4*t, 4), vr(vXa+t), mods=f'offset:{sl}')]
        for part in range(2):
            for j in range(2):
                L.append(lambda part=part, j=j: A('ds_read_b64_tr_b16', vr(vF + 8*t + 4*part + 2*j, 2), vr(vWa), mods=f'offset:{sl + part*8192 + (16*t + 4*j)*128}'))
        return L
    def R(i, t):
        for f in Rl(i, t): f()
    def M(i, t, h):
        acc = accV if h else accK
        A('v_mfma_f32_32x32x16_bf16', vr(acc, 16), vr(vF + 8*t + 4*h, 4), ar(16*i + 4*t, 4), '0' if (i == 0 and t == 0) else vr(acc, 16))
    def G(i):
        sl = (i & 3) * 16384
        A('s_cmp_lg_u32', sr(sHQ), i)
        A('s_cbranch_scc1', f'B_NG{i}')
        raw(A, f'ds_read_b128 v[{vGX}:{vGX+3}], v{vGa} offset:{sl}', f'ds_read_b128 v[{vGX+4}:{vGX+7}], v{vGa+1} offset:{sl}')
        A.label(f'B_NG{i}')
    A.waitmark('st0')
    A('s_barrier')
    stamp(A, opt, 1)
    for t in range(4): R(0, t)
    G(0)
    RD = opt.get('rd', [3, 4, 3, 3, 4, 3, 0, 0])
    DM = opt.get('dm', [0, 0, 0, 0, 0, 1, 2, 1])
    for m in range(4): M(0, m >> 1, m & 1)
    for i in range(8):
        if i == 5:
            A('s_cmp_lg_u32', sr(sW), 0)
            A('s_cbranch_scc1', 'B_NOZL')
            zcheck_issue(A, vZC, vT2)
            A.label('B_NOZL')
        if i < 7: A.waitmark(f'st{i+1}', 0)
        else: A('s_waitcnt', 'lgkmcnt(0)')
        A('s_barrier')
        if i in (0, 3, 6): stamp(A, opt, {0: 2, 3: 3, 6: 4}[i])
        rl = sum([Rl(i + 1, t) for t in range(4)], []) if i < 7 else []
        k = 0
        for m in range(8 if i < 7 else 4):
            if m < 4: M(i, 2 + (m >> 1), m & 1)
            else: M(i + 1, (m - 4) >> 1, m & 1)
            if i < 7:
                for _ in range(RD[m]): rl.pop(0)()
                if not rl and RD[m]: G(i + 1)
                for _ in range(DM[m]): piece(i + 4, k); k += 1
            elif m < 2: piece(11, m)
            if i == 0 and m == 6:
                for h in range(2):
                    for j in range(2):
                        A('ds_read_b64_tr_b16', vr(vPH + 4*h + 2*j, 2), vr(vPa), mods=f'offset:{h*512 + j*256}')
            if i == 1 and m == 6:
                A('v_bfe_u32', vr(vT3), vr(vL), 2, 1)
                A('v_cmp_eq_u32', 'vcc', 0, vr(vT3))
                for kk in range(4):
                    A('v_cndmask_b32', vr(vPH+kk), 0, vr(vPH+kk), 'vcc')
                    A('v_cndmask_b32', vr(vPH+4+kk), vr(vPH+4+kk), 0, 'vcc', mods='')
        assert not rl
    stamp(A, opt, 5)
    kp, pp, ph = 48, 56, 88
    tmp = 16
    vp = 72
    for k in range(8):
        A('v_cvt_pk_bf16_f32', vr(kp+k), vr(accK+2*k), vr(accK+2*k+1))
    A('v_mfma_f32_32x32x16_bf16', vr(pp, 16), vr(vPH, 4), vr(kp, 4), '0')
    A('v_mfma_f32_32x32x16_bf16', vr(pp, 16), vr(vPH+4, 4), vr(kp+4, 4), vr(pp, 16))
    for k in range(8):
        A('v_cvt_pk_bf16_f32', vr(vp+k), vr(accV+2*k), vr(accV+2*k+1))
    A('ds_write_b128', vr(vVw), vr(vp, 4))
    A('ds_write_b128', vr(vVw), vr(vp+4, 4), mods='offset:4096')
    ones = 44
    for k in range(4): A('v_mov_b32', vr(ones+k), '0x3f803f80')
    softmax_pm(A, pp, ph, tmp)
    for fh in range(2):
        for j in range(2):
            A('ds_write_b128', vr(vEw), vr(ph + 8*fh + 4*j, 4), mods=f'offset:{fh*4096 + j*16}')
    A('s_lshl_b32', sr(sT0), sr(sW), 6)
    A('s_add_u32', sr(sT0), sr(sT0), 8192)
    A('s_add_u32', sr(sKVh), sr(sKVh), sr(sT0))
    A('s_cmp_lg_u32', sr(sW), 0)
    A('s_cbranch_scc1', 'B_NOZW')
    zcheck_wait(A, vZC, vT2, 'B_ZW', 8)
    A.label('B_NOZW')
    A.waitmark('wq', 0)
    A('s_barrier')
    stamp(A, opt, 6)
    fa, fb, aKV, aZ = 48, 64, 16, 20
    for kk in range(4):
        for j in range(2):
            A('ds_read_b64_tr_b16', vr(fa + 4*kk + 2*j, 2), vr(vPr), mods=f'offset:{kk*1024 + j*512}')
        for j in range(2):
            A('ds_read_b64_tr_b16', vr(fb + 4*kk + 2*j, 2), vr(vVr), mods=f'offset:{kk*1024 + j*512}')
    A('v_and_b32', vr(vT3), 1, vr(vL))
    A('v_cmp_eq_u32', 'vcc', 0, vr(vT3))
    A('v_and_b32', vr(vT3), 2, vr(vL))
    A('v_cmp_eq_u32', 's[62:63]', 0, vr(vT3))
    for kk in range(4):
        A('v_mfma_f32_16x16x32_bf16', vr(aKV, 4), vr(fa + 4*kk, 4), vr(fb + 4*kk, 4), '0' if kk == 0 else vr(aKV, 4))
        A('v_mfma_f32_16x16x32_bf16', vr(aZ, 4), vr(fa + 4*kk, 4), vr(ones, 4), '0' if kk == 0 else vr(aZ, 4))
    T_, TZ, TZERO = 114688, 114688 + 4096, 114688 + 4096 + 256
    A('v_mov_b32', vr(vT3), 0)
    A('v_add_u32', vr(vT2), TZERO, vr(vKo))
    A('ds_write_b32', vr(vT2), vr(vT3))
    for r in range(4):
        A('buffer_atomic_add_f32', vr(aKV + r), vr(vKo), sr(sWS, 4), sr(sKVw), mods='offen' + (f' offset:{256*r}' if r else '') + ' sc1')
    A('v_cndmask_b32', vr(aZ), vr(aZ+1), vr(aZ), 'vcc')
    A('v_cndmask_b32', vr(aZ+2), vr(aZ+3), vr(aZ+2), 'vcc')
    A('v_cndmask_b32', vr(aZ), vr(aZ+2), vr(aZ), 's[62:63]')
    A('buffer_atomic_add_f32', vr(aZ), vr(vZo), sr(sWS, 4), sr(sKVh), mods='offen sc1')
    vGW = 72
    A('v_lshlrev_b32', vr(vT2), 4, vr(vT1))
    A('s_lshl_b32', sr(sT0), sr(sHQ), 1)
    A('s_add_u32', sr(sT0), sr(sT0), sr(sHH))
    A('s_lshl_b32', sr(sT1), sr(sT0), 6)
    A('buffer_load_dwordx4', vr(vGW, 4), vr(vT2), sr(sGW, 4), sr(sT1), mods='offen')
    A('buffer_load_dwordx4', vr(vGW+4, 4), vr(vT2), sr(sGW, 4), sr(sT1), mods='offen offset:32')
    stamp(A, opt, 7)
    accQ = 24
    nbuf = 6
    def RQ(n):
        i, t = n >> 2, n & 3
        base = vWa if WQ_AT[i] >= 65536 else vWq
        off = WQ_AT[i] & 65535
        f = vF + 4*(n % nbuf)
        for j in range(2):
            A('ds_read_b64_tr_b16', vr(f + 2*j, 2), vr(base), mods=f'offset:{off + (16*t + 4*j)*128}')
    for n in range(nbuf - 1): RQ(n)
    vZl, vTw, vTZw, vTa, vTZr, vOo, vGo = 104, 105, 106, 107, 108, 109, 110
    sOo, sGo = 40, 41
    fillers = []
    F = lambda *a, **k: fillers.append((a, k))
    F('v_and_b32', vr(vT3), 15, vr(vL))
    F('v_and_b32', vr(vZl), 48, vr(vL))
    F('v_lshrrev_b32', vr(vTZw), 1, vr(vZl))
    F('v_lshl_add_u32', vr(vTw), vr(vT3), 6, vr(vTZw))
    F('s_lshr_b32', sr(sT2), sr(sW), 1)
    F('s_lshl_b32', sr(sT2), sr(sT2), 10)
    F('s_and_b32', sr(sT1), sr(sW), 1)
    F('s_lshl_b32', sr(sT1), sr(sT1), 5)
    F('s_add_u32', sr(sT2), sr(sT2), sr(sT1))
    F('s_add_u32', sr(sT2), sr(sT2), T_)
    F('v_add_u32', vr(vTw), sr(sT2), vr(vTw))
    F('s_lshl_b32', sr(sT2), sr(sW), 5)
    F('s_add_u32', sr(sT2), sr(sT2), TZ)
    F('v_add_u32', vr(vTZw), sr(sT2), vr(vTZw))
    F('v_bfe_u32', vr(vT3), vr(vL), 3, 1)
    F('v_lshlrev_b32', vr(vTa), 9, vr(vT3))
    F('v_bfe_u32', vr(vT3), vr(vL), 4, 1)
    F('v_lshl_add_u32', vr(vTa), vr(vT3), 8, vr(vTa))
    F('v_and_b32', vr(vT3), 3, vr(vL))
    F('v_lshl_add_u32', vr(vTa), vr(vT3), 6, vr(vTa))
    F('v_lshl_add_u32', vr(vTa), vr(vT1), 10, vr(vTa))
    F('s_lshl_b32', sr(sT2), sr(sHH), 11)
    F('s_add_u32', sr(sT2), sr(sT2), T_)
    F('v_add_u32', vr(vTa), sr(sT2), vr(vTa))
    F('v_bfe_u32', vr(vT3), vr(vL), 2, 1)
    F('v_cmp_eq_u32', 'vcc', vr(vT3), vr(vT1))
    F('v_mov_b32', vr(vT3), TZERO)
    F('v_cndmask_b32', vr(vTa), vr(vT3), vr(vTa), 'vcc')
    F('s_lshl_b32', sr(sT2), sr(sHH), 7)
    F('s_add_u32', sr(sT2), sr(sT2), TZ)
    F('v_lshl_add_u32', vr(vTZr), vr(vT1), 6, sr(sT2))
    F('v_lshlrev_b32', vr(vOo), 4, vr(vL))
    F('v_lshlrev_b32', vr(vGo), 2, vr(vT0))
    F('v_lshl_or_b32', vr(vGo), vr(vT1), 31, vr(vGo))
    F('s_lshl_b32', sr(sT2), sr(sRB), 2)
    F('s_and_b32', sr(sT1), sr(sW), 3)
    F('s_add_u32', sr(sT2), sr(sT2), sr(sT1))
    F('s_lshl_b32', sr(sT2), sr(sT2), 4)
    F('s_add_u32', sr(sT2), sr(sT2), sr(sT0))
    F('s_lshl_b32', sr(sOo), sr(sT2), 11)
    F('s_add_u32', sr(sOo), sr(sOo), hex(WS_O))
    F('s_lshl_b32', sr(sGo), sr(sT2), 7)
    F('s_add_u32', sr(sGo), sr(sGo), hex(WS_GP))
    F('s_lshl_b32', sr(sT2), sr(sHQ), 7)
    F('s_add_u32', sr(sT2), sr(sT2), hex(WS_CN + 128*CN_KV))
    F('v_mov_b32', vr(vCn), sr(sT2))
    for n in range(32):
        if n + nbuf - 1 < 32: RQ(n + nbuf - 1)
        A('v_mfma_f32_32x32x16_bf16', vr(accQ, 16), vr(vF + 4*(n % nbuf), 4), ar(4*n, 4), '0' if n == 0 else vr(accQ, 16))
        for _ in range(3):
            if fillers:
                a, k = fillers.pop(0); A(*a, **k)
    assert not fillers
    A('s_waitcnt', 'vmcnt(0)')
    A('s_barrier')
    stamp(A, opt, 8)
    A('s_cmp_lg_u32', sr(sW), 0)
    A('s_cbranch_scc1', 'B_NOSIG')
    signal(A, vCn, vT3)
    A.label('B_NOSIG')
    wo_dma(A, [0, 1, 2, 3], vWoT, sT1, sT2)
    for k in range(8):
        A('v_cvt_pk_bf16_f32', vr(kp+k), vr(accQ+2*k), vr(accQ+2*k+1))
    A('v_mfma_f32_32x32x16_bf16', vr(pp, 16), vr(vPH, 4), vr(kp, 4), '0')
    A('v_mfma_f32_32x32x16_bf16', vr(pp, 16), vr(vPH+4, 4), vr(kp+4, 4), vr(pp, 16))
    g, t0 = 40, 16
    A('v_mov_b32', vr(g), 0)
    A('s_mov_b32', sr(sT2), '0x3f803f80')
    for k in range(8):
        a, b = t0 + 4*(k & 1), t0 + 4*(k & 1) + 2
        A('v_lshlrev_b32', vr(a), 16, vr(vGX+k))
        A('v_and_b32', vr(a+1), '0xffff0000', vr(vGX+k))
        A('v_lshlrev_b32', vr(b), 16, vr(vGW+k))
        A('v_and_b32', vr(b+1), '0xffff0000', vr(vGW+k))
        A('v_pk_mul_f32', vr(a, 2), vr(a, 2), vr(b, 2))
        A('v_cvt_pk_bf16_f32', vr(a), vr(a), vr(a+1))
        A('v_dot2_f32_bf16', vr(g), vr(a), sr(sT2), vr(g))
    A('v_mov_b32', vr(g+1), vr(g))
    A('v_permlane32_swap_b32', vr(g), vr(g+1))
    A('v_add_f32', vr(g), vr(g), vr(g+1))
    A('buffer_store_dword', vr(g), vr(vGo), sr(sWS, 4), sr(sGo), mods='offen sc1')
    softmax_pm(A, pp, ph, tmp)
    stamp(A, opt, 9)
    A('s_cmp_lg_u32', sr(sW), 0)
    A('s_cbranch_scc1', 'B_NOPOLL')
    bound_init(A)
    A.raw('B_POLL:')
    bound_step(A, 'B_NOPOLL')
    raw(A, f'global_load_dword v{vT3}, v{vCn}, s[36:37] sc1', 's_waitcnt vmcnt(0)', f'v_readfirstlane_b32 s{sT0}, v{vT3}',
        f's_cmp_lt_u32 s{sT0}, 16', 's_cbranch_scc1 B_POLL')
    A.label('B_NOPOLL')
    A('s_barrier')
    stamp(A, opt, 10)
    L0, zz = 16, 84
    for r in range(4):
        A('buffer_load_dword', vr(L0 + r), vr(vKo), sr(sWS, 4), sr(sKVw), mods='offen' + (f' offset:{256*r}' if r else '') + ' sc1')
    A('buffer_load_dwordx4', vr(zz, 4), vr(vZl), sr(sWS, 4), sr(sKVh), mods='offen sc1')
    A('s_add_u32', sr(sT2), sr(sRB), CN_O)
    A('s_lshl_b32', sr(sT2), sr(sT2), 7)
    A('s_add_u32', sr(sT2), sr(sT2), hex(WS_CN))
    A('v_mov_b32', vr(vCn), sr(sT2))
    A('v_cvt_pk_bf16_f32', vr(L0), vr(L0), vr(L0+1))
    A('v_cvt_pk_bf16_f32', vr(L0+1), vr(L0+2), vr(L0+3))
    A('ds_write_b64', vr(vTw), vr(L0, 2))
    A('v_cvt_pk_bf16_f32', vr(zz), vr(zz), vr(zz+1))
    A('v_cvt_pk_bf16_f32', vr(zz+1), vr(zz+2), vr(zz+3))
    A('s_mov_b32', 'exec_lo', '0x00010001')
    A('s_mov_b32', 'exec_hi', '0x00010001')
    A('ds_write_b64', vr(vTZw), vr(zz, 2))
    A('s_mov_b64', 'exec', -1)
    A('s_waitcnt', 'lgkmcnt(0)')
    A('s_barrier')
    tA, tZ, num, den = 32, 48, 16, 64
    for j in range(4): A('ds_read_b128', vr(tA + 4*j, 4), vr(vTa), mods=f'offset:{16*j}')
    for j in range(4): A('ds_read_b128', vr(tZ + 4*j, 4), vr(vTZr), mods=f'offset:{16*j}')
    for j in range(4):
        A('v_mfma_f32_32x32x16_bf16', vr(num, 16), vr(tA + 4*j, 4), vr(ph + 4*j, 4), '0' if j == 0 else vr(num, 16))
    for k in range(16):
        d = den + (k & 1)
        A('v_dot2_f32_bf16', vr(d), vr(ph + k), vr(tZ + k), '0' if k < 2 else vr(d))
    A('v_add_f32', vr(den), vr(den), vr(den+1))
    A('v_add_f32', vr(den), f2u(1e-6), vr(den))
    A('v_rcp_f32', vr(den), vr(den))
    o = 68
    for k in range(8):
        A('v_pk_mul_f32', vr(num+2*k, 2), vr(num+2*k, 2), vr(den, 2), mods='op_sel_hi:[1,0]')
        A('v_cvt_pk_bf16_f32', vr(o+k), vr(num+2*k), vr(num+2*k+1))
        if k == 3: A('buffer_store_dwordx4', vr(o, 4), vr(vOo), sr(sWS, 4), sr(sOo), mods='offen sc1')
        if k == 7: A('buffer_store_dwordx4', vr(o+4, 4), vr(vOo), sr(sWS, 4), sr(sOo), mods='offen offset:1024 sc1')
    A('s_branch', 'TAIL')
```

```python
from common import *
G_UP = 0x000000
G_AP = 0x200000
G_O  = 0x400000
G_P  = 0x600000
PQ   = 34*8192
G_R  = 0x820000
RQ   = 36*128
G_GP = 0x830000
G_PRE, PRE_W = 0x200000, 6400
G_ST = 0x900000
G_DB = 0xA00000
G_SZ = 0x1000000
sWS_ = 48
OOB = '0x80000000'

def raw(A, *lines):
    for l in lines: A.raw('  ' + l)

SAFE = [False]
def bound_init(A):
    if SAFE[0]: raw(A, 's_mov_b32 s11, 0')
def bound_step(A, out):
    if SAFE[0]: raw(A, 's_add_u32 s11, s11, 1', 's_cmp_gt_u32 s11, 20000', f's_cbranch_scc1 {out}')

def fl_issue(A, vd, vt):
    raw(A, f'v_lshlrev_b32 v{vt}, 5, v1', 's_mov_b64 exec, 0xff', f'global_load_dword v{vd}, v{vt}, s[34:35] sc1', 's_mov_b64 exec, -1')

def fl_wait(A, vd, vt, lab, vm):
    raw(A, f's_waitcnt vmcnt({vm})', 's_mov_b64 exec, 0xff', f'v_cmp_ne_u32 vcc, 32, v{vd}', f's_cbranch_vccz {lab}_OK', f'v_lshlrev_b32 v{vt}, 5, v1')
    bound_init(A)
    A.raw(f'{lab}_L:')
    bound_step(A, f'{lab}_OK')
    raw(A, f'global_load_dword v{vd}, v{vt}, s[34:35] sc1', 's_waitcnt vmcnt(0)', f'v_cmp_ne_u32 vcc, 32, v{vd}', f's_cbranch_vccnz {lab}_L')
    A.raw(f'{lab}_OK:')
    raw(A, 's_mov_b64 exec, -1')

def flush3(A, opt, n):
    if not opt.get('stamps'): return
    A('s_lshl_b32', 's98', 's2', 2)
    A('s_add_u32', 's98', 's98', 's4')
    A('s_lshl_b32', 's98', 's98', 7)
    A('s_add_u32', 's98', 's98', hex(G_ST))
    A('s_waitcnt', 'vmcnt(0) lgkmcnt(0)')
    A('v_mov_b32', 'v2', 0)
    for i in list(range(n)) + ([15] if opt.get('rt') else []):
        A('v_mov_b32', 'v0', sr(STB + 2*i))
        A('v_mov_b32', 'v1', sr(STB + 2*i + 1))
        A('buffer_store_dwordx2', 'v[0:1]', 'v2', sr(sWS_, 4), 's98', mods=f'offen offset:{8*i}')
        A('s_waitcnt', 'vmcnt(0)')

def maxtree(A, regs, d):
    regs = list(regs)
    halves = [regs[:len(regs)//2], regs[len(regs)//2:]] if len(regs) > 4 else [regs]
    ops = []
    for h, rs in enumerate(halves):
        t = d + h
        L = []
        if len(rs) == 1: L.append(('v_mov_b32', vr(t), vr(rs[0]))); rs = []
        elif len(rs) % 2 == 0: L.append(('v_max_u32', vr(t), vr(rs[0]), vr(rs[1]))); rs = rs[2:]
        else: L.append(('v_max3_u32', vr(t), vr(rs[0]), vr(rs[1]), vr(rs[2]))); rs = rs[3:]
        while rs:
            L.append(('v_max3_u32', vr(t), vr(t), vr(rs[0]), vr(rs[1]))); rs = rs[2:]
        ops.append(L)
    out = []
    for k in range(max(len(x) for x in ops)):
        for L in ops:
            if k < len(L): out.append(L[k])
    if len(halves) == 2: out.append(('v_max_u32', vr(d), vr(d), vr(d+1)))
    for o in out: A(*o)
```

```python
from common3 import *

RS = 528
YB, XB = 0, 2*32*RS
XS = 27*RS
KB0, KS = 64560, 8672
UOFF = 4544
assert XB + 2*XS <= KB0 and KB0 + 2*KS + 4 <= 81920
TX = 32768
XROWS = list(range(8)) + [256, 258, 260, 262, 264, 512, 516, 520, 768, 772, 776, 1024, 1032, 1280, 1288, 1536, 1544, 1792, 1800]
TILE = [[0, 1, 2, 3, 256, 256, 258, 260, 512, 516, 520, 1024, 768, 772, 776, 1536],
        [4, 5, 6, 7, 260, 260, 262, 264, 1032, 1280, 1288, 1288, 1544, 1792, 1800, 1800]]

def gen_a(A, opt):
    sW = 4
    sU, sWS, sWO, sOUT = 40, sWS_, 52, 56
    sC, sJ, sChl, sSet, sT0, sT1, sT2, sMY, sMX = 5, 6, 7, 3, 62, 63, 64, 65, 98
    sCP, sRow, sRT, sCT = 99, 100, 38, 39
    vL, vT0, vT1, vT2, vT3 = 1, 2, 3, 4, 5
    vU = 8
    pA, pI, pCr, pCi, pDt, pDs = 16, 17, 18, 19, 20, 21
    vGw, vG, vM1, vLin, vXo, vUo, vGo = 116, 112, 120, 124, 125, 126, 127
    nopre = opt.get('xnopre')
    if opt.get('aprio'): A('s_setprio', opt['aprio'])
    A('s_sub_u32', sr(sT0), 's2', 256)
    A('s_and_b32', sr(sC), sr(sT0), 7)
    A('s_lshr_b32', sr(sJ), sr(sT0), 3)
    A('s_lshl_b32', sr(sCP), sr(sC), 5)
    A('s_add_u32', sr(sCP), sr(sCP), sr(sJ))
    A('s_lshr_b32', sr(sChl), sr(sW), 1)
    A('s_and_b32', sr(sSet), sr(sW), 1)
    A('s_lshl_b32', sr(sT1), sr(sCP), 1)
    A('s_add_u32', sr(sT1), sr(sT1), sr(sChl))
    A('s_lshl_b32', sr(sT1), sr(sT1), 1)
    A('s_add_u32', sr(sT2), sr(sT1), sr(sSet))
    A('s_lshl_b32', sr(sT2), sr(sT2), 7)
    A('s_lshl_b32', sr(sRow), sr(sJ), 2)
    A('s_add_u32', sr(sRow), sr(sRow), sr(sW))
    A('s_lshl_b32', sr(sRow), sr(sRow), 4)
    A('v_lshlrev_b32', vr(vT0), 1, vr(vL))
    A('v_mov_b32', vr(vT1), 0)
    A('v_and_b32', vr(vT2), 3, vr(vL))
    A('v_and_b32', vr(vT3), 60, vr(vL))
    A('v_lshl_add_u32', vr(vXo), vr(vT2), 12, vr(vT3))
    A('v_lshlrev_b32', vr(vUo), 11, vr(vT3))
    A('v_lshl_add_u32', vr(vUo), vr(vT2), 4, vr(vUo))
    A('v_lshlrev_b32', vr(vLin), 4, vr(vL))
    for k in range(4): A('v_mov_b32', vr(vM1 + k), -1)
    sX, sGw, sUp0, sUp1, sPr0, sPr1 = 101, 38, 39, 60, 61, 65
    A('s_lshl_b32', sr(sGw), sr(sC), 7)
    A('s_lshl_b32', sr(sX), sr(sRow), 10)
    A('s_add_u32', sr(sX), sr(sX), sr(sGw))
    A('s_lshl_b32', sr(sUp0), sr(sC), 18)
    A('s_lshl_b32', sr(sUp1), sr(sRow), 2)
    A('s_add_u32', sr(sUp0), sr(sUp0), sr(sUp1))
    if G_UP: A('s_add_u32', sr(sUp0), sr(sUp0), hex(G_UP))
    A('s_add_u32', sr(sUp1), sr(sUp0), 16*8192)
    A('s_lshl_b32', sr(sPr0), sr(sT0), 2)
    A('s_add_u32', sr(sPr0), sr(sPr0), sr(sW))
    A('s_mul_i32', sr(sPr0), sr(sPr0), PRE_W)
    A('s_add_u32', sr(sPr0), sr(sPr0), hex(G_PRE))
    A('s_add_u32', sr(sPr1), sr(sPr0), 4096)
    A('s_waitcnt', 'lgkmcnt(0)')
    def xloads():
        srd(A, sU, 8, 2048*1024)
        for hf in range(2):
            for i in range(4):
                o = i*1024 + hf*64
                A('buffer_load_dword', vr(vU + 4*hf + i), vr(vXo), sr(sU, 4), sr(sX), mods='offen' + (f' offset:{o}' if o else ''))
    if opt.get('xfirst'): xloads()
    for k, (ptr, dst) in enumerate([(18, pDt), (10, pA), (12, pI), (14, pCr), (16, pCi), (20, pDs)]):
        s = [44, 52, 56, 44, 52, 56][k]
        small = ptr in (18, 20)
        srd(A, s, ptr, 1024 if small else 512*256)
        A('buffer_load_ushort', vr(dst), vr(vT1 if small else vT0), sr(s, 4), sr(sT1 if small else sT2), mods='offen')
    if not opt.get('xfirst'): xloads()
    srd(A, 44, 30, 1024)
    for hf in range(2):
        A('buffer_load_dword', vr(vGw + hf), vr(vT3), sr(44, 4), sr(sGw), mods='offen' + (' offset:64' if hf else ''))
    srd(A, sWS, 36, G_SZ)
    if not nopre:
        A('buffer_store_dwordx4', vr(vM1, 4), vr(vUo), sr(sWS, 4), sr(sUp0), mods='offen sc1')
        A('buffer_store_dwordx4', vr(vM1, 4), vr(vUo), sr(sWS, 4), sr(sUp1), mods='offen sc1')
        for k in range(6):
            o = 1024*(k & 3)
            A('buffer_store_dwordx4', vr(vM1, 4), vr(vLin), sr(sWS, 4), sr(sPr1 if k >= 4 else sPr0), mods='offen' + (f' offset:{o}' if o else '') + ' sc1')
        A('s_mov_b64', 'exec', '0xffff')
        A('buffer_store_dwordx4', vr(vM1, 4), vr(vLin), sr(sWS, 4), sr(sPr1), mods='offen offset:2048 sc1')
        A('s_mov_b64', 'exec', -1)
    A.mark('pre')
    stamp(A, opt, 0)
    sKb = 101
    A('s_mul_i32', sr(sKb), sr(sChl), KS)
    A('s_add_u32', sr(sKb), sr(sKb), KB0)
    A('v_mov_b32', vr(vT3), 0)
    A('s_mul_i32', sr(sT1), sr(sSet), 240)
    A('s_add_u32', sr(sT0), sr(sKb), sr(sT1))
    A('s_add_u32', sr(sT0), sr(sT0), 4096)
    A('v_min_u32', vr(vT1), 59, vr(vL))
    A('v_lshl_add_u32', vr(vT1), vr(vT1), 2, sr(sT0))
    A('ds_write_b32', vr(vT1), vr(vT3))
    A('v_lshlrev_b32', vr(vGo), 4, vr(vT2))
    A('v_bfe_u32', vr(vT1), vr(vL), 4, 1)
    A('v_lshl_add_u32', vr(vGo), vr(vT1), 3, vr(vGo))
    A('v_lshrrev_b32', vr(vT1), 5, vr(vL))
    A('v_lshl_add_u32', vr(vGo), vr(vT1), 2, vr(vGo))
    A('v_and_b32', vr(vT1), 12, vr(vL))
    A('v_cmp_eq_u32', 'vcc', 0, vr(vT1))
    A('v_mov_b32', vr(vT1), OOB)
    A('v_cndmask_b32', vr(vGo), vr(vT1), vr(vGo), 'vcc')
    vYa, vXa0, vXa1, vKw, vKr, vKw3, vUa, vSh, vUw, vUl, vDm = 22, 23, 24, 25, 26, 27, 28, 32, 33, 34, 35
    A('v_and_b32', vr(vT0), 15, vr(vL))
    A('v_lshrrev_b32', vr(vT1), 4, vr(vL))
    A('v_mul_u32_u24', vr(vYa), RS, vr(vT0))
    A('v_lshl_add_u32', vr(vYa), vr(vT1), 4, vr(vYa))
    A('s_mul_i32', sr(sT0), sr(sW), 16*RS)
    A('v_add_u32', vr(vYa), sr(sT0), vr(vYa))
    A('s_mul_i32', sr(sMX), sr(sChl), XS)
    A('s_add_u32', sr(sMX), sr(sMX), XB)
    for T in range(2):
        rows = [XROWS.index(x) for x in TILE[T]]
        lo = sum(rows[i] << (8*i) for i in range(8)); hi = sum(rows[8+i] << (8*i) for i in range(8))
        d = vXa0 + T
        A('s_mov_b32', 's52', hex(lo & 0xffffffff)); A('s_mov_b32', 's53', hex(lo >> 32))
        A('s_mov_b32', 's54', hex(hi & 0xffffffff)); A('s_mov_b32', 's55', hex(hi >> 32))
        A('v_and_b32', vr(vT2), 7, vr(vT0))
        A('v_lshlrev_b32', vr(vT2), 3, vr(vT2))
        A('v_lshrrev_b64', vr(36, 2), vr(vT2), 's[52:53]')
        A('v_lshrrev_b64', vr(38, 2), vr(vT2), 's[54:55]')
        A('v_cmp_gt_u32', 'vcc', 8, vr(vT0))
        A('v_cndmask_b32', vr(d), vr(38), vr(36), 'vcc')
        A('v_and_b32', vr(d), 255, vr(d))
        A('v_mul_u32_u24', vr(d), RS, vr(d))
        A('v_lshl_add_u32', vr(d), vr(vT1), 4, vr(d))
        A('v_add_u32', vr(d), sr(sMX), vr(d))
    A('s_lshl_b32', sr(sT1), sr(sSet), 8)
    A('s_add_u32', sr(sMX), sr(sMX), sr(sT1))
    A('s_sub_u32', sr(sT2), sr(sKb), sr(sT1))
    A('s_add_u32', sr(sT2), sr(sT2), 4080)
    A('v_lshlrev_b32', vr(vT2), 4, vr(vT0))
    A('v_lshl_add_u32', vr(vT2), vr(vT1), 9, vr(vT2))
    A('v_sub_u32', vr(vKw), sr(sT2), vr(vT2))
    A('v_lshlrev_b32', vr(vT2), 9, vr(vT1))
    A('v_sub_u32', vr(vKw3), vr(vKw), vr(vT2))
    A('v_subrev_u32', vr(vKw3), 512, vr(vKw3))
    A('s_add_u32', sr(sT2), sr(sKb), sr(sT1))
    A('s_add_u32', sr(sT0), sr(sT2), 4064 - 3584)
    A('v_lshlrev_b32', vr(vT2), 5, vr(vT0))
    A('v_sub_u32', vr(vKr), sr(sT0), vr(vT2))
    A('v_lshl_add_u32', vr(vKr), vr(vT1), 4, vr(vKr))
    A('s_add_u32', sr(sT2), sr(sT2), UOFF)
    A('v_add_u32', vr(vT2), 1, vr(vT0))
    A('v_lshrrev_b32', vr(vT2), 1, vr(vT2))
    A('v_lshl_add_u32', vr(vT2), vr(vT1), 2, vr(vT2))
    A('v_lshl_add_u32', vr(vUa), vr(vT2), 2, sr(sT2))
    for k in range(1, 4): A('v_add_u32', vr(vUa+k), 1024*k, vr(vUa))
    A('v_and_b32', vr(vSh), 1, vr(vT0))
    A('v_xor_b32', vr(vSh), 1, vr(vSh))
    A('v_lshlrev_b32', vr(vSh), 4, vr(vSh))
    A('v_lshlrev_b32', vr(vUw), 3, 'v0')
    A('v_add_u32', vr(vUw), KB0 + UOFF + 32, vr(vUw))
    A('v_lshlrev_b32', vr(vUl), 4, 'v0')
    A('v_cmp_eq_u32', 'vcc', 0, vr(vL))
    A('s_xor_b32', sr(sT0), sr(sSet), 1)
    A('s_mul_i32', sr(sT0), sr(sT0), '0xffff0000')
    A('v_mov_b32', vr(vT2), sr(sT0))
    A('v_cndmask_b32', vr(vDm), 0, vr(vT2), 'vcc')
    sL2E = 52
    A('s_mov_b32', sr(sL2E), f2u(1.4426950408889634))
    def rne(v):
        A('v_cvt_pk_bf16_f32', vr(v), vr(v), vr(v))
        A('v_and_b32', vr(v), '0xffff0000', vr(v))
    def xsend():
        for hf in range(2):
            A('v_min_u32', vr(vU + 4*hf), -2, vr(vU + 4*hf))
            A('buffer_store_dwordx4', vr(vU + 4*hf, 4), vr(vUo), sr(sWS, 4), sr(sUp1 if hf else sUp0), mods='offen sc1')
    def gate():
        for i in range(4): A('v_dot2_f32_bf16', vr(vG + i), vr(vU + i), vr(vGw), '0')
        for i in range(4): A('v_dot2_f32_bf16', vr(vG + i), vr(vU + 4 + i), vr(vGw + 1), vr(vG + i))
        A('v_permlane32_swap_b32', vr(vG), vr(vG + 1))
        A('v_permlane32_swap_b32', vr(vG + 2), vr(vG + 3))
        A('v_add_f32', vr(vG), vr(vG), vr(vG + 1))
        A('v_add_f32', vr(vG + 2), vr(vG + 2), vr(vG + 3))
        A('v_permlane16_swap_b32', vr(vG), vr(vG + 2))
        A('v_add_f32', vr(vG), vr(vG), vr(vG + 2))
        A('v_add_f32_dpp', vr(vG), vr(vG), vr(vG), mods='row_ror:4 row_mask:0xf bank_mask:0xf')
        A('v_add_f32_dpp', vr(vG), vr(vG), vr(vG), mods='row_ror:8 row_mask:0xf bank_mask:0xf')
        A('v_min_u32', vr(vGw), -2, vr(vG))
    def flag():
        if nopre: return
        A.waitmark('pre')
        A('s_barrier')
        A('s_cmp_lg_u32', sr(sW), 0)
        A('s_cbranch_scc1', 'A_NOAT')
        raw(A, f's_lshl_b32 s{sT0}, s{sC}, 5', f'v_mov_b32 v{vT2}, s{sT0}', f'v_mov_b32 v{vT3}, 1', 's_mov_b64 exec, 1',
            f'global_atomic_add v{vT2}, v{vT3}, s[34:35] sc1', 's_mov_b64 exec, -1')
        A.label('A_NOAT')
        stamp(A, opt, 2)
    fpos = opt.get('fpos', 1)
    for v in (pDt, pA):
        A('v_lshlrev_b32', vr(v), 16, vr(v))
        A('v_mul_f32', vr(v), sr(sL2E), vr(v))
        A('v_exp_f32', vr(v), vr(v))
        rne(v)
    stamp(A, opt, 1)
    for v in (pI, pCr, pCi): A('v_lshlrev_b32', vr(v), 16, vr(v))
    A('v_mul_f32', vr(pA), vr(pA), vr(pDt))
    A('v_mul_f32', vr(pI), vr(pI), vr(pDt))
    A('v_mul_f32', vr(pA), f2u(-1.4426950408889634), vr(pA))
    A('v_mul_f32', vr(pI), '0.15915494', vr(pI))
    A('v_add_f32', vr(pDt), vr(pDt), vr(pDt))
    xsend()
    A('s_mul_i32', sr(sMY), sr(sChl), 32*RS)
    A('s_lshl_b32', sr(sT0), sr(sSet), 8)
    A('s_add_u32', sr(sMY), sr(sMY), sr(sT0))
    if fpos == 0: flag()
    W1, W8, W256, W2, W4, W32 = 40, 42, 44, 46, 48, 50
    def anchor(d, p):
        e, th = 36, 37
        if p == 1:
            A('v_exp_f32', vr(e), vr(pA)); A('v_fract_f32', vr(th), vr(pI))
        else:
            A('v_mul_f32', vr(e), f2u(p), vr(pA)); A('v_mul_f32', vr(th), f2u(p), vr(pI))
            A('v_exp_f32', vr(e), vr(e)); A('v_fract_f32', vr(th), vr(th))
        A('v_cos_f32', vr(d), vr(th)); A('v_sin_f32', vr(d+1), vr(th))
        A('v_pk_mul_f32', vr(d, 2), vr(d, 2), vr(e, 2), mods='op_sel_hi:[1,0]')
    anchor(W8, 8); anchor(W256, 256); anchor(W1, 1)
    gate()
    A('v_lshlrev_b32', vr(pDs), 16, vr(pDs))
    A('v_and_b32', vr(vDm), vr(vDm), vr(pDs))
    apk = not opt.get('anopk')
    def cmuls(lst):
        if apk:
            for (d, a, b) in lst: A('v_pk_mul_f32', vr(d, 2), vr(a, 2), vr(b, 2), mods='op_sel:[0,0] op_sel_hi:[0,1]')
            for (d, a, b) in lst: A('v_pk_fma_f32', vr(d, 2), vr(a, 2), vr(b, 2), vr(d, 2), mods='op_sel:[1,1,0] op_sel_hi:[1,0,1] neg_lo:[1,0,0]')
        else:
            for (d, a, b) in lst:
                A('v_mul_f32', vr(d), vr(a), vr(b)); A('v_mul_f32', vr(d+1), vr(a), vr(b+1))
            for (d, a, b) in lst:
                A('v_fma_f32', vr(d), '-' + vr(a+1), vr(b+1), vr(d)); A('v_fmac_f32', vr(d+1), vr(a+1), vr(b))
    pk = [100]
    def put(rows, isx):
        A('s_mov_b32', 'm0', sr(sMX if isx else sMY))
        regs = []
        for (row, v) in rows:
            t = pk[0]; pk[0] = 100 + (pk[0] - 100 + 1) % 12
            if v is None: A('v_mov_b32', vr(t), '0x3f80')
            else: A('v_cvt_pk_bf16_f32', vr(t), vr(v), ('-' if isx else '') + vr(v+1))
            regs.append((row, t))
        for (row, t) in regs:
            off = XROWS.index(row)*RS if isx else row*RS
            A('ds_write_addtid_b32', vr(t), mods=f'offset:{off}')
    Y = lambda b: 52 + 2*(b % 8)
    X0 = pCr
    A('v_pk_mul_f32', vr(X0, 2), vr(X0, 2), vr(pDt, 2), mods='op_sel_hi:[1,0]')
    XA = 68
    xa = lambda i: XA + 2*i
    cmuls([(Y(2), W8, W8), (xa(0), X0, W256), (W2, W1, W1), (xa(8), X0, W1)])
    cmuls([(Y(3), Y(2), W8), (W32, Y(2), Y(2)), (xa(1), xa(0), W256), (W4, W2, W2), (xa(9), X0, W2)])
    put([(0, None), (1, W8), (2, Y(2)), (3, Y(3)), (4, W32)], False)
    if fpos == 1: flag()
    cmuls([(Y(5), W8, W32), (Y(6), Y(2), W32), (Y(7), Y(3), W32), (Y(8), W32, W32), (xa(2), xa(1), W256), (xa(10), xa(8), W2), (xa(11), X0, W4), (xa(12), xa(8), W4)])
    put([(0, X0), (1, xa(8)), (2, xa(9)), (3, xa(10)), (4, xa(11)), (5, xa(12)), (256, xa(0)), (512, xa(1)), (768, xa(2))], True)
    put([(b, Y(b)) for b in range(5, 9)], False)
    if fpos == 2: flag()
    chain = [(1024, 3, 2), (1280, 4, 3), (1536, 5, 4), (1792, 6, 5)]
    leaf = [(6, xa(9), W4), (7, xa(10), W4), (258, xa(0), W2), (260, xa(0), W4), (264, xa(0), W8), (516, xa(1), W4), (520, xa(1), W8),
            (772, xa(2), W4), (776, xa(2), W8), (262, None, W2), (1032, xa(3), W8), (1288, xa(4), W8), (1544, xa(5), W8), (1800, xa(6), W8)]
    sched = [([chain[0]], leaf[0:2]), ([chain[1]], leaf[2:4]), ([chain[2]], [leaf[9], leaf[4], leaf[5]]), ([chain[3]], leaf[6:9]), ([], leaf[10:13]), ([], leaf[13:14])]
    vFL = 117
    for gi, (ch, lf) in enumerate(sched):
        if fpos == 3 + gi: flag()
        if gi == opt.get('fiss', 4) and not nopre:
            A('s_cmp_lg_u32', sr(sW), 0)
            A('s_cbranch_scc1', 'A_NOFL')
            fl_issue(A, vFL, vT2)
            A.label('A_NOFL')
        b0 = 9 + 4*gi
        lst = [(Y(b), Y(b-4), W32) for b in range(b0, min(b0 + 4, 32))]
        rows = []
        for (row, di, si) in ch:
            lst.append((xa(di), xa(si), W256)); rows.append((row, xa(di)))
        for k, (row, src, mul) in enumerate(lf):
            d = xa(11 + k) if row != 260 else xa(7)
            if row == 262: src = xa(7)
            lst.append((d, src, mul)); rows.append((row, d))
        cmuls(lst)
        put([(b, Y(b)) for b in range(b0, min(b0 + 4, 32))], False)
        put(rows, True)
    sUl0, sUl1, sGp = 60, 61, 65
    A('s_lshl_b32', sr(sUl0), sr(sCP), 13)
    if G_UP: A('s_add_u32', sr(sUl0), sr(sUl0), hex(G_UP))
    A('s_add_u32', sr(sUl1), sr(sUl0), 4096)
    A('s_lshl_b32', sr(sT0), sr(sC), 13)
    A('s_lshl_b32', sr(sT1), sr(sRow), 2)
    A('s_add_u32', sr(sT0), sr(sT0), sr(sT1))
    A('s_add_u32', sr(sMX), sr(sT0), hex(G_GP))
    stamp(A, opt, 3)
    if not nopre:
        A('s_cmp_lg_u32', sr(sW), 0)
        A('s_cbranch_scc1', 'A_NOFW')
        fl_wait(A, vFL, vT2, 'A_FW', 0)
        A.label('A_NOFW')
    A('s_waitcnt', 'lgkmcnt(0)')
    A('s_barrier')
    stamp(A, opt, 4)
    def uloads(f):
        f('buffer_load_dwordx4', vr(vU, 4), vr(vUl), sr(sWS, 4), sr(sUl0), mods='offen sc1')
        f('buffer_load_dwordx4', vr(vU + 4, 4), vr(vUl), sr(sWS, 4), sr(sUl1), mods='offen sc1')
    uloads(A)
    A('buffer_store_dword', vr(vGw), vr(vGo), sr(sWS, 4), sr(sMX), mods='offen sc1')
    t0, t1, fY, fX = 40, 44, 48, 64
    def RK(s):
        k = s % 4
        A('ds_read_b128', vr(fY + 4*k, 4), vr(vYa), mods=f'offset:{64*s}')
        A('ds_read_b128', vr(fX + 8*k, 4), vr(vXa0), mods=f'offset:{64*s}')
        A('ds_read_b128', vr(fX + 8*k + 4, 4), vr(vXa1), mods=f'offset:{64*s}')
    for s in range(3): RK(s)
    sA, sWb, sWm, sRW, sKH = 62, 22, 23, 5, 6
    A('s_sub_u32', sr(sA), 's2', 256)
    A('s_lshr_b32', sr(sCT), sr(sA), 5)
    A('s_bfe_u32', sr(sT1), sr(sA), '0x20003')
    A('s_lshl_b32', sr(sRT), sr(sC), 2)
    A('s_add_u32', sr(sRT), sr(sRT), sr(sT1))
    A('s_lshl_b32', sr(sWb), sr(sW), 13)
    A('s_lshl_b32', sr(sT1), sr(sCT), 7)
    A('s_add_u32', sr(sWb), sr(sWb), sr(sT1))
    A('s_lshl_b32', sr(sWm), sr(sW), 10)
    srd(A, sWO, 28, 512*1024)
    vWoD = 116
    for s in range(8):
        if s + 3 < 8: RK(s + 3)
        k = s % 4
        A('v_mfma_f32_16x16x32_bf16', vr(t0, 4), vr(fX + 8*k, 4), vr(fY + 4*k, 4), '0' if s == 0 else vr(t0, 4))
        A('v_mfma_f32_16x16x32_bf16', vr(t1, 4), vr(fX + 8*k + 4, 4), vr(fY + 4*k, 4), '0' if s == 0 else vr(t1, 4))
        if s == 5:
            A('v_lshrrev_b32', vr(vT2), 2, vr(vL))
            A('v_and_b32', vr(vT2), 4, vr(vT2))
            A('s_lshl_b32', sr(sT1), sr(sSet), 1)
            A('v_xor_b32', vr(vT2), sr(sT1), vr(vT2))
            A('v_and_b32', vr(vT3), 7, vr(vL))
            A('v_xor_b32', vr(vT2), vr(vT2), vr(vT3))
            A('v_lshlrev_b32', vr(vT2), 4, vr(vT2))
            A('v_lshrrev_b32', vr(vT3), 3, vr(vL))
            A('v_lshl_add_u32', vr(118), vr(vT3), 10, vr(vT2))
    o = 48
    A('v_and_b32', vr(vT2), 1, vr(vL))
    A('v_cmp_eq_u32', 'vcc', 0, vr(vT2))
    A('v_add_f32', vr(t0), vr(t0), vr(vDm))
    A('s_mov_b32', 'exec_hi', 0)
    A('v_cvt_pk_bf16_f32', vr(o), vr(t1+3), vr(t1+2))
    A('v_cvt_pk_bf16_f32', vr(o+1), vr(t1+1), vr(t1))
    A('v_cvt_pk_bf16_f32', vr(o+2), vr(t0+3), vr(t0+2))
    A('v_cvt_pk_bf16_f32', vr(o+3), vr(t0+1), vr(t0))
    A('s_mov_b32', 'exec_lo', 0)
    A('s_mov_b32', 'exec_hi', -1)
    A('v_cvt_pk_bf16_f32', vr(o), vr(t0+2), vr(t0+2))
    A('v_cvt_pk_bf16_f32', vr(o+1), vr(t0+1), vr(t0+1))
    A('v_cvt_pk_bf16_f32', vr(o+2), vr(t0+1), vr(t0))
    A('v_cvt_pk_bf16_f32', vr(o+3), vr(t0), vr(t0))
    for q, (own, nxt) in enumerate([(t0+3, t1), (t1+1, t1+2)]):
        d = o + 4 + 4*q
        A('v_cndmask_b32', vr(vT2), vr(nxt), vr(own), 'vcc')
        A('v_cvt_pk_bf16_f32', vr(d), vr(nxt), vr(nxt))
        A('v_cvt_pk_bf16_f32', vr(d+1), vr(nxt), vr(vT2))
        A('v_cvt_pk_bf16_f32', vr(d+2), vr(own), vr(own))
        A('v_mov_b32', vr(d+3), vr(d+2))
        A('ds_write_b128', vr(vKw3), vr(d, 4), mods='offset:512' if q == 0 else '')
    A('s_mov_b64', 'exec', -1)
    A('ds_write_b128', vr(vKw), vr(o, 4))
    A('v_mov_b32', vr(vWoD), vr(118))
    stamp(A, opt, 5)
    late = []
    bound_init(A)
    A('v_max_u32', vr(vT2), vr(vU), vr(vU + 4))
    A.label('A_UCK')
    A('v_cmp_eq_u32', 'vcc', -1, vr(vT2))
    A('s_cbranch_vccnz', 'A_URT')
    A.label('A_UOK')
    L = Asm(); L.label('A_URT'); bound_step(L, 'A_UOK'); uloads(L); L('v_max_u32', vr(vT2), vr(vU), vr(vU + 4)); L('s_branch', 'A_UCK'); late.append(L)
    A('s_mov_b32', sr(sT0), '0x05040100')
    A('s_mov_b32', sr(sT1), '0x07060302')
    for c in range(2):
        for h in range(2):
            d = 64 + 4*c + 2*h
            A('v_perm_b32', vr(d), vr(vU + 4*h + 1), vr(vU + 4*h), sr(sT1 if c else sT0))
            A('v_perm_b32', vr(d+1), vr(vU + 4*h + 3), vr(vU + 4*h + 2), sr(sT1 if c else sT0))
            A('ds_write_b64', vr(vUw), vr(d, 2), mods=f'offset:{c*KS + h*2048}' if c or h else '')
    A('s_waitcnt', 'lgkmcnt(0)')
    A('s_barrier')
    stamp(A, opt, 6)
    if opt.get('dumpk'):
        A('v_lshl_add_u32', vr(vT2), vr(vL), 4, sr(sKb))
        A('s_lshl_b32', sr(sT0), sr(sCP), 1)
        A('s_add_u32', sr(sT0), sr(sT0), sr(sChl))
        A('s_lshl_b32', sr(sT0), sr(sT0), 13)
        A('s_add_u32', sr(sT0), sr(sT0), hex(G_DB))
        for j in range(4):
            A('ds_read_b128', vr(48, 4), vr(vT2), mods=f'offset:{1024*j}')
            A('buffer_store_dwordx4', vr(48, 4), vr(vLin), sr(sWS, 4), sr(sT0), mods=f'offen offset:{1024*j}')
            A('s_waitcnt', 'vmcnt(0)')
    vWr, vEw, vEr, vAs, vAl, vGl, vOut, vPr, vTw = 117, 121, 122, 123, 125, 127, 6, 7, 114
    sO, sAl, sGl, sOo, sAs, sAok = 40, 44, 60, 99, 100, 101
    fill = []
    F = lambda *a, **k: fill.append((a, k))
    F('s_and_b32', sr(sRW), sr(sW), 1)
    F('s_lshr_b32', sr(sKH), sr(sW), 1)
    F('v_bfe_u32', vr(vT2), vr(vL), 2, 2)
    F('v_lshl_add_u32', vr(vT2), vr(vT1), 3, vr(vT2))
    F('v_and_b32', vr(vT3), 3, vr(vL))
    F('v_lshlrev_b32', vr(vT3), 3, vr(vT3))
    F('v_lshl_add_u32', vr(vWr), vr(vT2), 7, vr(vT3))
    F('v_bfe_u32', vr(vT2), vr(vL), 3, 2)
    F('v_lshlrev_b32', vr(vT3), 6, vr(vT2))
    F('v_lshlrev_b32', vr(vT2), 4, vr(vT2))
    F('v_and_b32', vr(vT3), 64, vr(vT3))
    F('v_and_b32', vr(vT2), 32, vr(vT2))
    F('s_lshl_b32', sr(sT2), sr(sKH), 12)
    F('v_or3_b32', vr(vWr), vr(vWr), vr(vT2), vr(vT3))
    F('v_add_u32', vr(vWr), sr(sT2), vr(vWr))
    for t in range(1, 4): F('v_xor_b32', vr(vWr + t), 32*t, vr(vWr))
    F('v_add_u32', vr(vEw), sr(sWm), vr(vLin))
    F('s_lshl_b32', sr(sT2), sr(sW), 13)
    F('v_add_u32', vr(vEr), sr(sT2), vr(vLin))
    F('v_lshlrev_b32', vr(vAs), 6, vr(vT0))
    F('v_lshl_add_u32', vr(vAs), vr(vT1), 4, vr(vAs))
    F('s_lshl_b32', sr(sAs), sr(sCP), 13)
    F('s_lshl_b32', sr(sT2), sr(sW), 11)
    F('s_add_u32', sr(sAs), sr(sAs), sr(sT2))
    F('s_add_u32', sr(sAs), sr(sAs), hex(G_AP))
    F('v_lshlrev_b32', vr(vT2), 2, vr(vT0))
    F('v_lshl_add_u32', vr(vAl), vr(vT1), 14, vr(vT2))
    F('v_add_u32', vr(vAl + 1), 8192, vr(vAl))
    F('v_lshl_add_u32', vr(vGl), vr(vT1), 13, vr(vT2))
    F('s_lshl_b32', sr(sT2), sr(sRT), 1)
    F('s_add_u32', sr(sT2), sr(sT2), sr(sRW))
    F('s_lshl_b32', sr(sT2), sr(sT2), 1)
    F('s_add_u32', sr(sOo), sr(sT2), sr(sKH))
    F('s_xor_b32', sr(sT2), sr(sOo), 1)
    F('s_lshl_b32', sr(sO), sr(sT2), 14)
    F('s_lshl_b32', sr(sT2), sr(sKH), 13)
    F('s_add_u32', sr(sO), sr(sO), sr(sT2))
    F('s_add_u32', sr(sO), sr(sO), hex(G_O))
    F('s_add_u32', sr(sO + 1), sr(sO), 4096)
    F('s_xor_b32', sr(sO + 2), sr(sO), 16384)
    F('s_xor_b32', sr(sO + 3), sr(sO + 1), 16384)
    F('s_lshl_b32', sr(sT2), sr(sOo), 6)
    F('s_add_u32', sr(sGl), sr(sT2), hex(G_GP))
    F('s_add_u32', sr(sGl + 1), sr(sGl), 32768)
    F('s_lshl_b32', sr(sAl), sr(sCT), 18)
    F('s_add_u32', sr(sAl), sr(sAl), sr(sT2))
    F('s_add_u32', sr(sAl), sr(sAl), hex(G_AP))
    for t in range(1, 4): F('s_add_u32', sr(sAl + t), sr(sAl), 65536*t)
    F('s_lshl_b32', sr(sOo), sr(sOo), 14)
    F('s_lshl_b32', sr(sT2), sr(sCT), 7)
    F('s_add_u32', sr(sOo), sr(sOo), sr(sT2))
    F('v_lshlrev_b32', vr(vOut), 10, vr(vT0))
    F('v_and_b32', vr(vT2), 1, vr(vT1))
    F('v_lshl_add_u32', vr(vOut), vr(vT2), 5, vr(vOut))
    F('v_lshrrev_b32', vr(vT2), 1, vr(vT1))
    F('v_lshl_add_u32', vr(vOut), vr(vT2), 4, vr(vOut))
    F('v_lshlrev_b32', vr(vPr), 10, vr(vL))
    F('v_add_u32', vr(vPr), 768, vr(vPr))
    F('s_lshl_b32', sr(sT2), sr(sW), 12)
    F('s_add_u32', sr(sT2), sr(sT2), TX)
    F('v_add_u32', vr(vTw), sr(sT2), vr(vLin))
    F('v_xor_b32', vr(vTw + 1), 8192, vr(vTw))
    F('s_mov_b32', sr(sOUT), 's32')
    F('s_and_b32', sr(sOUT + 1), 's33', '0xffff')
    F('s_mov_b32', sr(sOUT + 2), hex(2048*1024))
    F('s_mov_b32', sr(sOUT + 3), '0x20000')
    acc, rawr, al = 40, 72, 96
    def RA(n):
        a, rr = n >> 2, n & 3
        r = rawr + 6*(n % 4)
        o0 = 128*(a & 1) + 16*rr
        A('ds_read2_b32', vr(r, 2), vr(vUa + (a >> 1)), mods=f'offset0:{o0} offset1:{o0+1}')
        A('ds_read2_b32', vr(r+2, 2), vr(vUa + (a >> 1)), mods=f'offset0:{o0+2} offset1:{o0+3}')
        A('ds_read_b32', vr(r+4), vr(vUa + (a >> 1)), mods=f'offset:{4*(o0+4)}')
    def AL(n):
        r = rawr + 6*(n % 4); d = al + 4*(n % 4)
        for k in range(4): A('v_alignbit_b32', vr(d+k), vr(r+k+1), vr(r+k), vr(vSh))
    def RB(rr):
        for b in range(8):
            A('ds_read_b128', ar(32*rr + 4*b, 4), vr(vKr), mods=f'offset:{3584 - 512*b + 64*rr}')
    def wo_piece(be):
        kp, kh = be >> 1, be & 1
        A('s_add_u32', 'm0', sr(sWm), be*4096)
        A('s_add_u32', sr(sT0), sr(sWb), (256*kh + 32*kp)*1024)
        A('buffer_load_dwordx4', vr(vWoD), sr(sWO, 4), sr(sT0), mods='offen lds')
    def wo_read(kp, t, jj):
        A('ds_read_b64_tr_b16', ar(32*t + 4*(7 - kp) + 2*jj, 2), vr(vWr + t), mods=f'offset:{kp*8192 + jj*512}')
    def ex_write(j):
        A('ds_write_b128', vr(vEw), vr(acc + 4*j, 4), mods=f'offset:{4096*j}' if j else '')
    NM, NM2 = opt.get('nm', 16), opt.get('nm2', 20)
    pieces = list(range(15))
    extra = {n: [] for n in range(33)}
    rd = [(kp, t, jj) for kp in range(4) for t in range(4) for jj in range(2)]
    per = -(-32 // (NM2 - NM))
    for n in range(NM, NM2):
        for x in rd[(n - NM)*per:(n - NM + 1)*per]: extra[n].append(lambda x=x: wo_read(*x))
    for kp in range(4, 7):
        for t in range(4):
            n = max(4*kp + t + 1, NM2)
            for jj in range(2): extra[n].append(lambda x=(kp, t, jj): wo_read(*x))
    wn = NM2
    for j in range(7):
        wn = max(wn, 4*j + 5)
        extra[wn].append(lambda j=j: ex_write(j)); wn += 1
    RA(0); RB(0); RA(1); AL(0); RA(2)
    started = set()
    for n in range(32):
        a, rr = n >> 2, n & 3
        nb = 8 - a
        if n == NM:
            assert not pieces and not fill, (len(pieces), len(fill))
            A.waitmark('wo')
            A('s_barrier')
            wo_piece(15); A.mark('wo2')
            stamp(A, opt, 7)
        if n == NM2:
            A('s_waitcnt', 'lgkmcnt(0)')
            A('s_barrier')
        ex = extra[n]
        for b in range(nb):
            j = a + b
            A('v_mfma_f32_16x16x32_bf16', vr(acc + 4*j, 4), vr(al + 4*(n % 4), 4), ar(32*rr + 4*b, 4), vr(acc + 4*j, 4) if j in started else '0')
            started.add(j)
            if b == 0:
                if n < 3: RB(n + 1)
                if n + 3 < 32: RA(n + 3)
            if b == min(1, nb - 1) and n + 1 < 32: AL(n + 1)
            if b in (2, 5) and pieces:
                wo_piece(pieces.pop(0))
                if not pieces: A.mark('wo')
            if b >= 2 and n >= 3:
                for _ in range(2):
                    if fill:
                        a_, k_ = fill.pop(0); A(*a_, **k_)
            k = -(-len(ex) // (nb - b))
            for _ in range(k): ex.pop(0)()
    for f in extra[32]: f()
    ex_write(7)
    stamp(A, opt, 8)
    A.waitmark('wo2', 0)
    A('s_barrier')
    E, ao = 72, 104
    for i in range(2):
        for w in range(4): A('ds_read_b128', vr(E + 16*i + 4*w, 4), vr(vEr), mods=f'offset:{4096*i + 1024*w}' if i or w else '')
    for t in range(4):
        for jj in range(2): wo_read(7, t, jj)
    for i in range(2):
        e = E + 16*i
        for c in range(2):
            for k in range(2): A('v_pk_add_f32', vr(e + 8*c + 2*k, 2), vr(e + 8*c + 2*k, 2), vr(e + 8*c + 4 + 2*k, 2))
        for k in range(4): A('v_cvt_pk_bf16_f32', vr(ao + 4*i + k), vr(e + k), vr(e + 8 + k))
        for k in range(4): A('v_min_u32', vr(ao + 4*i + k), -2, vr(ao + 4*i + k))
        A('buffer_store_dwordx4', vr(ao + 4*i, 4), vr(vAs), sr(sWS, 4), sr(sAs), mods='offen' + (' offset:1024' if i else '') + ' sc1')
    stamp(A, opt, 9)
    vA, vGp, vPd = 40, 112, 24
    def aloads(f):
        for t in range(4):
            for e in range(2): f('buffer_load_dword', vr(vA + 2*t + e), vr(vAl + e), sr(sWS, 4), sr(sAl + t), mods='offen sc1')
        for e in range(2): f('buffer_load_dword', vr(vGp + e), vr(vGl), sr(sWS, 4), sr(sGl + e), mods='offen sc1')
    def acheck(f):
        f('v_max3_u32', vr(vT2), vr(vA), vr(vA + 1), vr(vA + 2))
        f('v_max3_u32', vr(vT3), vr(vA + 3), vr(vA + 4), vr(vA + 5))
        f('v_max3_u32', vr(vT2), vr(vT2), vr(vA + 6), vr(vA + 7))
        f('v_max3_u32', vr(vT3), vr(vT3), vr(vGp), vr(vGp + 1))
        f('v_max_u32', vr(vT2), vr(vT2), vr(vT3))
        f('v_cmp_eq_u32', 'vcc', -1, vr(vT2))
    aloads(A)
    A('s_mov_b32', sr(sAok), 0)
    A('s_mov_b64', 'exec', '0xff')
    bound_init(A)
    A.label('T_PROBE')
    bound_step(A, 'T_PROX')
    A('buffer_load_dword', vr(vPd), vr(vPr), sr(sWS, 4), sr(sO + 2), mods='offen sc1')
    A('s_waitcnt', 'vmcnt(0)')
    A('v_cmp_eq_u32', 'vcc', -1, vr(vPd))
    A('s_cbranch_vccnz', 'T_PROBE')
    A.label('T_PROX')
    A('s_mov_b64', 'exec', -1)
    stamp(A, opt, 10)
    OF = 48
    def oload(f, i):
        ph, kp = i >> 3, i & 7
        o = 1024*(kp & 3)
        f('buffer_load_dwordx4', vr(OF + 4*i, 4), vr(vLin), sr(sWS, 4), sr(sO + 2*ph + (kp >> 2)), mods='offen' + (f' offset:{o}' if o else '') + ' sc1')
    for i in range(16): oload(A, i)
    acheck(A)
    A('s_cbranch_vccnz', 'T_ART0')
    A.label('T_AOK0')
    L = Asm(); L.label('T_ART0'); aloads(L); L('s_mov_b32', sr(sAok), 1); L('s_branch', 'T_AOK0'); late.append(L)
    accS, accK = 8, 24
    vg, vom, tmp = 112, 113, OF
    bound_init(A)
    for i in range(16):
        ph, kp = i >> 3, i & 7
        A('v_cmp_eq_u32', 'vcc', -1, vr(OF + 4*i))
        A('s_cbranch_vccnz', f'T_RT{i}')
        A.label(f'T_OK{i}')
        L = Asm(); L.label(f'T_RT{i}'); bound_step(L, f'T_OK{i}'); oload(L, i)
        L('v_cmp_eq_u32', 'vcc', -1, vr(OF + 4*i)); L('s_cbranch_vccnz', f'T_RT{i}'); L('s_nop', 1); L('s_branch', f'T_OK{i}'); late.append(L)
        if i == 0: stamp(A, opt, 11)
        ac = accK if ph else accS
        for t in range(4):
            A('v_mfma_f32_16x16x32_bf16', vr(ac + 4*t, 4), ar(32*t + 4*(7 - kp), 4), vr(OF + 4*i, 4), '0' if kp == 0 else vr(ac + 4*t, 4))
        if i == 8:
            for t in range(4): A('ds_write_b128', vr(vTw), vr(accS + 4*t, 4), mods=f'offset:{1024*t}' if t else '')
        if i == 9:
            A('s_cmp_lg_u32', sr(sAok), 0)
            A('s_cbranch_scc1', 'T_ART')
            A.label('T_AOK')
            L = Asm(); L.label('T_ART'); L('s_waitcnt', 'vmcnt(0)'); acheck(L); L('s_cbranch_vccz', 'T_AOK'); L.label('T_ART1'); bound_step(L, 'T_AOK'); aloads(L); acheck(L)
            L('s_cbranch_vccnz', 'T_ART1'); L('s_branch', 'T_AOK'); late.append(L)
            A('v_add_f32', vr(vGp), vr(vGp), vr(vGp + 1))
            A('v_mov_b32', vr(vGp + 1), vr(vGp))
            A('v_permlane32_swap_b32', vr(vGp), vr(vGp + 1))
            A('v_add_f32', vr(vGp), vr(vGp), vr(vGp + 1))
            A('v_mov_b32', vr(vGp + 1), vr(vGp))
            A('v_permlane16_swap_b32', vr(vGp), vr(vGp + 1))
            A('v_add_f32', vr(vGp), vr(vGp), vr(vGp + 1))
            A('v_cvt_pk_bf16_f32', vr(vGp), vr(vGp), vr(vGp))
            A('v_and_b32', vr(vGp), '0xffff0000', vr(vGp))
            A('v_mul_f32', vr(vGp), f2u(-1.4426950408889634), vr(vGp))
            A('v_exp_f32', vr(vGp), vr(vGp))
            A('v_add_f32', vr(vGp), 1.0, vr(vGp))
            A('v_rcp_f32', vr(vGp), vr(vGp))
            A('v_cvt_pk_bf16_f32', vr(vg), vr(vGp), vr(vGp))
            A('v_and_b32', vr(vg), '0xffff0000', vr(vg))
            A('v_sub_f32', vr(vom), 1.0, vr(vg))
            A('v_cvt_pk_bf16_f32', vr(vom), vr(vom), vr(vom))
            A('v_and_b32', vr(vom), '0xffff0000', vr(vom))
        if i in (10, 11):
            for k in range(4*(i - 10), 4*(i - 9)):
                A('v_lshlrev_b32', vr(tmp + 2*k), 16, vr(vA + k))
                A('v_and_b32', vr(tmp + 2*k + 1), '0xffff0000', vr(vA + k))
                A('v_mul_f32', vr(tmp + 2*k), vr(tmp + 2*k), vr(vg))
                A('v_mul_f32', vr(tmp + 2*k + 1), vr(tmp + 2*k + 1), vr(vg))
        if i == 11:
            A('s_waitcnt', 'lgkmcnt(0)')
            A('s_barrier')
            for t in range(4): A('ds_read_b128', vr(accS + 4*t, 4), vr(vTw + 1), mods=f'offset:{1024*t}' if t else '')
        if i in (13, 14):
            for k in range(8*(i - 13), 8*(i - 12)): A('v_fmac_f32', vr(tmp + k), vr(accS + k), vr(vom))
    stamp(A, opt, 12)
    P = 64
    for h in range(2):
        for k in range(8*h, 8*h + 8): A('v_fmac_f32', vr(tmp + k), vr(accK + k), vr(vom))
        for k in range(4*h, 4*h + 4): A('v_cvt_pk_bf16_f32', vr(P + k), vr(tmp + 2*k), vr(tmp + 2*k + 1))
        A('v_permlane16_swap_b32', vr(P + 4*h), vr(P + 4*h + 2))
        A('v_permlane16_swap_b32', vr(P + 4*h + 1), vr(P + 4*h + 3))
        A('buffer_store_dwordx4', vr(P + 4*h, 4), vr(vOut), sr(sOUT, 4), sr(sOo), mods='offen' + (' offset:64' if h else '') + opt.get('wt2', ''))
    stamp(A, opt, 13)
    if opt.get('stamps'):
        A('s_waitcnt', 'vmcnt(0)')
        stamp(A, opt, 14)
        flush3(A, opt, 15)
    A('s_endpgm')
    for L in late: A.raw(L.finalize().rstrip('\n'))
```

```python
from common3 import *

XSL = [0, 8192, 16384]
WB = 24576
WSL = [WB, WB + 16384, WB + 32768]
EXT = 73728
WQ_AT = [XSL[2], WSL[2], WSL[2] + 8192, XSL[0], WSL[0], WSL[0] + 8192, EXT, XSL[1]]
XCH = WSL[1]

def sm_pre(p, tmp):
    mx, mn = tmp, tmp + 2
    L = []
    A = lambda *a, **k: L.append((a, k))
    A('v_max3_f32', vr(mx), vr(p), vr(p+1), vr(p+2))
    A('v_min3_f32', vr(mn), vr(p), vr(p+1), vr(p+2))
    A('v_max3_f32', vr(mx+1), vr(p+3), vr(p+4), vr(p+5))
    A('v_min3_f32', vr(mn+1), vr(p+3), vr(p+4), vr(p+5))
    for k in (6, 10):
        A('v_max3_f32', vr(mx), vr(mx), vr(p+k), vr(p+k+1))
        A('v_min3_f32', vr(mn), vr(mn), vr(p+k), vr(p+k+1))
        A('v_max3_f32', vr(mx+1), vr(mx+1), vr(p+k+2), vr(p+k+3))
        A('v_min3_f32', vr(mn+1), vr(mn+1), vr(p+k+2), vr(p+k+3))
    A('v_max3_f32', vr(mx), vr(mx), vr(p+14), vr(p+15))
    A('v_min3_f32', vr(mn), vr(mn), vr(p+14), vr(p+15))
    A('v_max_f32', vr(mx), vr(mx), vr(mx+1))
    A('v_min_f32', vr(mn), vr(mn), vr(mn+1))
    A('v_mul_f32', vr(mx), 's61', vr(mx))
    A('v_mul_f32', vr(mn), 's60', vr(mn))
    return L

def sm_half(sgn, p, ph, tmp, pk):
    mx, mn, e, sm = tmp, tmp + 2, tmp + 4, tmp + 20
    L = []
    A = lambda *a, **k: L.append((a, k))
    b = mx if sgn == 0 else mn
    d = e if sgn == 0 else p
    s8 = ph + 8*sgn
    if pk:
        sel = 'op_sel_hi:[1,0,0]' if sgn == 0 else 'op_sel:[0,1,0] op_sel_hi:[1,1,0]'
        for k in range(8): A('v_pk_fma_f32', vr(d+2*k, 2), vr(p+2*k, 2), 's[60:61]', vr(b, 2), mods=sel)
        for k in range(16): A('v_exp_f32', vr(d+k), vr(d+k))
        for k in range(4): A('v_pk_add_f32', vr(s8+2*k, 2), vr(d+4*k, 2), vr(d+4*k+2, 2))
        A('v_pk_add_f32', vr(s8, 2), vr(s8, 2), vr(s8+2, 2))
        A('v_pk_add_f32', vr(s8+4, 2), vr(s8+4, 2), vr(s8+6, 2))
        A('v_pk_add_f32', vr(s8, 2), vr(s8, 2), vr(s8+4, 2))
        A('v_add_f32', vr(sm), vr(s8), vr(s8+1))
        A('v_rcp_f32', vr(sm), vr(sm))
        for k in range(8): A('v_pk_mul_f32', vr(d+2*k, 2), vr(d+2*k, 2), vr(sm, 2), mods='op_sel_hi:[1,0]')
    else:
        c = 's60' if sgn == 0 else 's61'
        for k in range(16): A('v_fma_f32', vr(d+k), vr(p+k), c, vr(b))
        for k in range(16):
            A('v_exp_f32', vr(d+k), vr(d+k))
            if k >= 3 and k & 1: A('v_add_f32', vr(s8+(k-3)//2), vr(d+k-3), vr(d+k-2))
        A('v_add_f32', vr(s8), vr(s8), vr(s8+1))
        A('v_add_f32', vr(s8+7), vr(d+14), vr(d+15))
        A('v_add_f32', vr(s8+2), vr(s8+2), vr(s8+3))
        A('v_add_f32', vr(s8+4), vr(s8+4), vr(s8+5))
        A('v_add_f32', vr(s8+6), vr(s8+6), vr(s8+7))
        A('v_add_f32', vr(s8), vr(s8), vr(s8+2))
        A('v_add_f32', vr(s8+4), vr(s8+4), vr(s8+6))
        A('v_add_f32', vr(sm), vr(s8), vr(s8+4))
        A('v_rcp_f32', vr(sm), vr(sm))
        for k in range(16): A('v_mul_f32', vr(d+k), vr(d+k), vr(sm))
    for k in range(8): A('v_cvt_pk_bf16_f32', vr(s8+k), vr(d+2*k), vr(d+2*k+1))
    return L

def emit(A, L):
    for a, k in L: A(*a, **k)

def weave(A, main, extra, start, every=1, per=1):
    extra = list(extra)
    for i, (a, k) in enumerate(main):
        A(*a, **k)
        if i >= start and (i - start) % every == 0:
            for _ in range(per):
                if extra:
                    a2, k2 = extra.pop(0); A(*a2, **k2)
    for a2, k2 in extra: A(*a2, **k2)

def gen_b(A, opt):
    sW = 4
    sU, sWQ, sWS, sPH = 40, 44, sWS_, 52
    sR, sHQ, sRG, sHH, sT0, sT1, sT2, sM, sXb, sWb, sKB, sXk, sWk0, sWk1 = 5, 6, 7, 3, 62, 63, 64, 65, 98, 99, 100, 101, 38, 39
    sPs, sZs, sRs, sOs, sLs = 52, 53, 54, 55, 56
    vL = 1
    vT0, vT1, vT2, vT3 = 2, 3, 4, 5
    vXo0, vXo1, vWo = 6, 7, 8
    vXa = 10
    vWa, vWq = 14, 15
    accK, accV = 16, 32
    vF = 48
    vPH = 80
    ph = 88
    vI = 104
    vOn = 112
    vEx, vEx2, vPo, vZo, vFL = 120, 121, 122, 123, 124
    pk = opt.get('bpk', False)
    A('s_setprio', opt.get('bprio', 2))
    A('s_and_b32', sr(sT0), 's2', 7)
    A('s_lshr_b32', sr(sT1), 's2', 3)
    A('s_lshr_b32', sr(sR), sr(sT0), 1)
    A('s_lshl_b32', sr(sR), sr(sR), 3)
    A('s_and_b32', sr(sT2), sr(sT1), 7)
    A('s_add_u32', sr(sR), sr(sR), sr(sT2))
    A('s_and_b32', sr(sT0), sr(sT0), 1)
    A('s_lshr_b32', sr(sT1), sr(sT1), 3)
    A('s_lshl_b32', sr(sHQ), sr(sT0), 2)
    A('s_add_u32', sr(sHQ), sr(sHQ), sr(sT1))
    if opt.get('norot'): A('s_mov_b32', sr(sKB), 0)
    else:
        A('s_add_u32', sr(sKB), sr(sR), sr(sHQ))
        A('s_and_b32', sr(sKB), sr(sKB), 7)
    A('v_lshrrev_b32', vr(vT0), 3, vr(vL))
    A('v_and_b32', vr(vT1), 7, vr(vL))
    A('v_lshrrev_b32', vr(vT2), 4, vr(vL))
    A('v_xor_b32', vr(vXo0), vr(vT1), vr(vT2))
    A('v_lshlrev_b32', vr(vXo0), 4, vr(vXo0))
    A('v_lshl_add_u32', vr(vXo0), vr(vT0), 10, vr(vXo0))
    A('v_xor_b32', vr(vXo1), 64, vr(vXo0))
    A('v_add_u32', vr(vXo1), 8192, vr(vXo1))
    A('v_and_b32', vr(vT2), 1, vr(vT2))
    A('v_lshlrev_b32', vr(vT2), 2, vr(vT2))
    A('v_xor_b32', vr(vT1), vr(vT1), vr(vT2))
    A('v_lshlrev_b32', vr(vT1), 4, vr(vT1))
    A('v_mul_u32_u24', vr(vWo), 3072, vr(vT0))
    A('v_add_u32', vr(vWo), vr(vWo), vr(vT1))
    A('s_lshl_b32', sr(sXb), sr(sR), 2)
    A('s_add_u32', sr(sXb), sr(sXb), sr(sW))
    A('s_lshl_b32', sr(sXb), sr(sXb), 14)
    A('s_mul_i32', sr(sWb), sr(sW), 16*3072)
    A('s_lshl_b32', sr(sT0), sr(sHQ), 7)
    A('s_add_u32', sr(sWb), sr(sWb), sr(sT0))
    A('s_lshl_b32', sr(sM), sr(sW), 11)
    def coords(x=True):
        if x:
            A('s_lshl_b32', sr(sXk), sr(sKB), 7)
            A('s_add_u32', sr(sXk), sr(sXk), sr(sXb))
        A('s_mul_i32', sr(sWk0), sr(sKB), 64*3072)
        A('s_add_u32', sr(sWk0), sr(sWk0), sr(sWb))
        A('s_add_u32', sr(sWk1), sr(sWk0), 8*3072)
        A('s_add_u32', sr(sKB), sr(sKB), 1)
        A('s_and_b32', sr(sKB), sr(sKB), 7)
    def piece(i, k):
        if k == 0: coords()
        if k < 2:
            A('s_add_u32', 'm0', sr(sM), XSL[i % 3] + 1024*k)
            A('buffer_load_dwordx4', vr(vXo1 if k else vXo0), sr(sU, 4), sr(sXk), mods='offen lds')
        else:
            part, half = (k - 2) >> 1, k & 1
            A('s_add_u32', 'm0', sr(sM), WSL[i % 3] + part*8192 + half*1024 - (part + 1)*1024)
            A('buffer_load_dwordx4', vr(vWo), sr(sWQ, 4), sr(sWk1 if half else sWk0), mods=f'offen offset:{(part + 1)*1024} lds')
        if k == 5: A.mark(f'st{i}')
    def qpiece(j, half):
        if half == 0: coords(False)
        A('s_add_u32', 'm0', sr(sM), WQ_AT[j] + half*1024)
        A('buffer_load_dwordx4', vr(vWo), sr(sWQ, 4), sr(sWk1 if half else sWk0), mods='offen lds')
        if j == 7 and half: A.mark('wq')
    coords()
    A('s_waitcnt', 'lgkmcnt(0)')
    srd(A, sU, 8, 2048*1024)
    srd(A, sWQ, 24, 512*3072)
    first = [True]
    def stage(i):
        for k in range(6):
            if k == 0 and first[0]:
                first[0] = False
                A('s_add_u32', 'm0', sr(sM), XSL[0])
                A('buffer_load_dwordx4', vr(vXo0), sr(sU, 4), sr(sXk), mods='offen lds')
            else: piece(i, k)
    stage(0)
    stamp(A, opt, 0)
    srd(A, sPH, 26, 32*512)
    A('v_lshlrev_b32', vr(vT0), 2, vr(vL))
    A('s_lshl_b32', sr(sT0), sr(sHQ), 2)
    A('s_add_u32', sr(sT0), sr(sT0), sr(sW))
    A('s_lshl_b32', sr(sT0), sr(sT0), 9)
    A('s_lshl_b32', sr(sT1), sr(sW), 9)
    A('s_add_u32', 'm0', sr(sT1), EXT)
    A('buffer_load_dword', vr(vT0), sr(sPH, 4), sr(sT0), mods='offen lds')
    A('buffer_load_dword', vr(vT0), sr(sPH, 4), sr(sT0), mods='offen offset:256 lds')
    stage(1)
    stage(2)
    srd(A, sWS, 36, G_SZ)
    A('s_and_b32', sr(sRG), sr(sW), 1)
    A('s_lshr_b32', sr(sHH), sr(sW), 1)
    A('v_lshrrev_b32', vr(vT1), 5, vr(vL))
    A('v_and_b32', vr(vT0), 31, vr(vL))
    A('v_bfe_u32', vr(vT2), vr(vL), 1, 3)
    A('v_xor_b32', vr(vT2), vr(vT2), vr(vT1))
    A('v_lshlrev_b32', vr(vT2), 4, vr(vT2))
    A('v_lshl_add_u32', vr(vXa), vr(vT0), 7, vr(vT2))
    A('s_lshl_b32', sr(sT2), sr(sRG), 12)
    A('v_add_u32', vr(vXa), sr(sT2), vr(vXa))
    for t in range(1, 4):
        A('v_xor_b32', vr(vXa+t), 32*t, vr(vXa))
    vR, vC, vPa = 125, 126, 127
    A('v_bfe_u32', vr(vR), vr(vL), 2, 2)
    A('v_and_b32', vr(vC), 3, vr(vL))
    A('v_lshlrev_b32', vr(vC), 3, vr(vC))
    A('v_bfe_u32', vr(vT2), vr(vL), 4, 1)
    A('v_lshl_add_u32', vr(vC), vr(vT2), 5, vr(vC))
    A('v_bfe_u32', vr(vT3), vr(vL), 3, 1)
    A('v_lshl_add_u32', vr(vC), vr(vT3), 6, vr(vC))
    A('s_lshl_b32', sr(sT2), sr(sHH), 6)
    A('v_xor_b32', vr(vWq), sr(sT2), vr(vC))
    A('v_lshl_add_u32', vr(vT3), vr(vT1), 3, vr(vR))
    A('v_lshl_add_u32', vr(vWq), vr(vT3), 7, vr(vWq))
    A('v_add_u32', vr(vWa), WB, vr(vWq))
    A('v_lshl_add_u32', vr(vT3), vr(vT1), 2, vr(vR))
    A('v_lshlrev_b32', vr(vPa), 5, vr(vT3))
    A('v_lshl_add_u32', vr(vPa), vr(vT2), 4, vr(vPa))
    A('v_bfe_u32', vr(vT3), vr(vL), 1, 1)
    A('v_lshl_add_u32', vr(vPa), vr(vT3), 3, vr(vPa))
    A('s_lshl_b32', sr(sT2), sr(sHH), 10)
    A('s_add_u32', sr(sT2), sr(sT2), EXT)
    A('v_add_u32', vr(vPa), sr(sT2), vr(vPa))
    A('s_mov_b32', 's60', f2u(1.4426950408889634))
    A('s_mov_b32', 's61', f2u(-1.4426950408889634))
    fill = []
    F = lambda *a, **k: fill.append((a, k))
    F('v_and_b32', vr(vT2), 1, vr(vL))
    F('v_cmp_eq_u32', 's[58:59]', 0, vr(vT2))
    F('v_mov_b32', vr(vT2), '0x3f80')
    F('v_mov_b32', vr(vT3), '0x3f800000')
    F('v_cndmask_b32', vr(vR), vr(vT3), vr(vT2), 's[58:59]')
    F('v_lshrrev_b32', vr(vT2), 1, vr(vT0))
    F('v_lshlrev_b32', vr(vT3), 3, vr(vT1))
    F('v_sub_u32', vr(vC), vr(vT2), vr(vT3))
    for k in range(8):
        F('v_cmp_eq_u32', 'vcc', k, vr(vC))
        F('v_cndmask_b32', vr(vI + k), 0, vr(vR), 'vcc')
    F('v_mov_b32', vr(vT2), '0x3f803f80')
    for k in range(4): F('v_cndmask_b32', vr(vOn + k), 0, vr(vT2), 's[58:59]')
    for k in range(4): F('v_cndmask_b32', vr(vOn + 4 + k), vr(vT2), 0, 's[58:59]')
    F('s_lshl_b32', sr(sT2), sr(sW), 12)
    F('s_add_u32', sr(sT2), sr(sT2), XCH)
    F('v_lshl_add_u32', vr(vEx), vr(vL), 4, sr(sT2))
    F('v_xor_b32', vr(vEx2), 4096, vr(vEx))
    F('v_bfe_u32', vr(vT2), vr(vL), 2, 2)
    F('v_lshlrev_b32', vr(vPo), 14, vr(vT2))
    F('v_and_b32', vr(vT2), 3, vr(vL))
    F('v_lshl_add_u32', vr(vPo), vr(vT2), 6, vr(vPo))
    F('v_and_b32', vr(vT3), 48, vr(vL))
    F('v_add_u32', vr(vPo), vr(vT3), vr(vPo))
    F('v_and_b32', vr(vT2), 15, vr(vL))
    F('v_lshl_add_u32', vr(vT3), vr(vT2), 7, vr(vT3))
    F('v_cmp_gt_u32', 'vcc', 2, vr(vT2))
    F('v_mov_b32', vr(vZo), OOB)
    F('v_cndmask_b32', vr(vZo), vr(vZo), vr(vT3), 'vcc')
    F('s_mul_i32', sr(sLs), sr(sHQ), PQ)
    F('s_add_u32', sr(sLs), sr(sLs), hex(G_P))
    F('s_lshl_b32', sr(sT2), sr(sR), 8)
    F('s_add_u32', sr(sZs), sr(sLs), sr(sT2))
    F('s_lshl_b32', sr(sT2), sr(sHH), 4)
    F('s_add_u32', sr(sT2), sr(sT2), sr(sRG))
    F('s_lshl_b32', sr(sT2), sr(sT2), 13)
    F('s_add_u32', sr(sPs), sr(sZs), sr(sT2))
    F('s_lshl_b32', sr(sT2), sr(sHH), 13)
    F('s_add_u32', sr(sZs), sr(sZs), sr(sT2))
    F('s_lshl_b32', sr(sT2), sr(sRG), 6)
    F('s_add_u32', sr(sT2), sr(sT2), 32*8192)
    F('s_add_u32', sr(sZs), sr(sZs), sr(sT2))
    def Rl(i, t):
        L = [lambda: A('ds_read_b128', ar(16*i + 4*t, 4), vr(vXa+t), mods=f'offset:{XSL[i % 3]}')]
        for part in range(2):
            for j in range(2):
                L.append(lambda part=part, j=j: A('ds_read_b64_tr_b16', vr(vF + 8*t + 4*part + 2*j, 2), vr(vWa), mods=f'offset:{WSL[i % 3] - WB + part*8192 + (16*t + 4*j)*128}'))
        return L
    def M(i, t, h):
        acc = accV if h else accK
        c = '0' if (i == 0 and t == 0) else vr(acc, 16)
        if h: A('v_mfma_f32_32x32x16_bf16', vr(acc, 16), ar(16*i + 4*t, 4), vr(vF + 8*t + 4, 4), c)
        else: A('v_mfma_f32_32x32x16_bf16', vr(acc, 16), vr(vF + 8*t, 4), ar(16*i + 4*t, 4), c)
    A.waitmark('st0')
    A('s_barrier')
    stamp(A, opt, 1)
    for t in range(4):
        for f in Rl(0, t): f()
    RD = opt.get('rd', [3, 3, 3, 3, 3, 3, 2, 0])
    DM = opt.get('dm', [1, 1, 1, 1, 1, 1, 0, 0])
    for m in range(4): M(0, m >> 1, m & 1)
    for i in range(8):
        if i == 5 and not opt.get('xnopre'):
            A('s_cmp_lg_u32', sr(sW), 0)
            A('s_cbranch_scc1', 'B_NOFL')
            fl_issue(A, vFL, vPa)
            A.label('B_NOFL')
        if i < 7: A.waitmark(f'st{i+1}', 0)
        else: A('s_waitcnt', 'lgkmcnt(0)')
        A('s_barrier')
        if i in (0, 3, 6): stamp(A, opt, {0: 2, 3: 3, 6: 4}[i])
        rl = sum([Rl(i + 1, t) for t in range(4)], []) if i < 7 else []
        if i < 5: cp = [lambda k=k: piece(i + 3, k) for k in range(6)]
        elif i < 7: cp = [lambda k=k: qpiece(3*(i - 5) + (k >> 1), k & 1) for k in range(6)]
        else: cp = [lambda k=k: qpiece(6 + (k >> 1), k & 1) for k in range(4)]
        for m in range(8 if i < 7 else 4):
            if m < 4: M(i, 2 + (m >> 1), m & 1)
            else: M(i + 1, (m - 4) >> 1, m & 1)
            if i < 7:
                for _ in range(RD[m]): rl.pop(0)()
            for _ in range(DM[m]):
                if cp: cp.pop(0)()
            if i == 0 and m == 6:
                for h in range(2):
                    for j in range(2):
                        A('ds_read_b64_tr_b16', vr(vPH + 4*h + 2*j, 2), vr(vPa), mods=f'offset:{h*512 + j*256}')
            if i == 1 and m == 6:
                A('s_cmp_eq_u32', sr(sRG), 0)
                A('s_cselect_b32', sr(sT2), '0x80008000', 0)
                A('v_bfe_u32', vr(vT3), vr(vL), 2, 1)
                A('v_cmp_eq_u32', 'vcc', 0, vr(vT3))
                for kk in range(8): A('v_xor_b32', vr(vPH+kk), sr(sT2), vr(vPH+kk))
                for kk in range(4):
                    A('v_cndmask_b32', vr(vPH+kk), 0, vr(vPH+kk), 'vcc')
                    A('v_cndmask_b32', vr(vPH+4+kk), vr(vPH+4+kk), 0, 'vcc', mods='')
            if 2 <= i < 7 and m >= 5:
                for _ in range(5):
                    if fill and i != 4 + 0 * m or (fill and i == 4):
                        a, k = fill.pop(0); A(*a, **k)
        assert not rl and not cp
    assert not fill, len(fill)
    stamp(A, opt, 5)
    kp, pp, vp, tmp = 48, 56, 72, 16
    D0, phT, sKV, sZ, cKV = 20, 40, 48, 6, 20
    for k in range(8): A('v_cvt_pk_bf16_f32', vr(kp+k), vr(accK+2*k), vr(accK+2*k+1))
    A('v_mfma_f32_32x32x16_bf16', vr(pp, 16), vr(vPH, 4), vr(kp, 4), '0')
    A('v_mfma_f32_32x32x16_bf16', vr(pp, 16), vr(vPH+4, 4), vr(kp+4, 4), vr(pp, 16))
    for k in range(8): A('v_cvt_pk_bf16_f32', vr(vp+k), vr(accV+2*k), vr(accV+2*k+1))
    for k in range(4): A('v_permlane16_swap_b32', vr(vp+k), vr(vp+4+k))
    emit(A, sm_pre(pp, tmp))
    emit(A, sm_half(0, pp, ph, tmp, pk))
    def turn(D, src):
        A('v_mfma_f32_32x32x16_bf16', vr(D, 16), vr(src, 4), vr(vI, 4), '0')
        A('v_mfma_f32_32x32x16_bf16', vr(D, 16), vr(src+4, 4), vr(vI+4, 4), vr(D, 16))
    def contr(D, kv, z, cin):
        L = []
        B = lambda *a, **k: L.append((a, k))
        for k in range(8): B('v_cvt_pk_bf16_f32', vr(phT+k), vr(D+2*k), vr(D+2*k+1))
        for k in range(4): B('v_permlane16_swap_b32', vr(phT+k), vr(phT+4+k))
        B('v_mfma_f32_16x16x32_bf16', vr(z, 4), vr(phT, 4), vr(vOn, 4), vr(z, 4) if cin else '0')
        B('v_mfma_f32_16x16x32_bf16', vr(kv, 4), vr(phT, 4), vr(vp, 4), vr(kv, 4) if cin else '0')
        B('v_mfma_f32_16x16x32_bf16', vr(kv+4, 4), vr(phT+4, 4), vr(vp+4, 4), vr(kv+4, 4) if cin else '0')
        B('v_mfma_f32_16x16x32_bf16', vr(z, 4), vr(phT+4, 4), vr(vOn+4, 4), vr(z, 4))
        return L
    turn(D0, ph)
    h1 = sm_half(1, pp, ph, tmp, pk)
    ex = contr(D0, sKV, sZ, False)
    wr = [(('ds_write_b128', vr(vEx), vr(sKV, 4)), {}), (('ds_write_b128', vr(vEx), vr(sKV+4, 4)), dict(mods='offset:1024')),
          (('ds_write_b128', vr(vEx), vr(sZ, 4)), dict(mods='offset:2048'))]
    n1 = len(h1)
    pos = 14
    seq = h1[:pos]
    rest = h1[pos:]
    for it in ex:
        seq.append(it); seq.append(rest.pop(0))
    seq += rest[:10]; rest = rest[10:]
    for it in wr:
        seq.append(it); seq.append(rest.pop(0))
    seq += rest
    emit(A, seq)
    turn(pp, ph + 8)
    if not opt.get('xnopre'):
        A('s_cmp_lg_u32', sr(sW), 0)
        A('s_cbranch_scc1', 'B_NOFW')
        fl_wait(A, vFL, vT2, 'B_FW', 0)
        A.label('B_NOFW')
    A.waitmark('wq', 0)
    A('s_barrier')
    stamp(A, opt, 6)
    for k in range(3): A('ds_read_b128', vr(cKV + 4*k, 4), vr(vEx2), mods=f'offset:{1024*k}' if k else '')
    accQ = 32
    nbuf = 6
    def RQ_(n):
        i, t = n >> 2, n & 3
        base = vWa if WQ_AT[i] >= WB else vWq
        off = WQ_AT[i] - (WB if WQ_AT[i] >= WB else 0)
        f = 48 + 4*(n % nbuf)
        for j in range(2):
            A('ds_read_b64_tr_b16', vr(f + 2*j, 2), vr(base), mods=f'offset:{off + (16*t + 4*j)*128}')
    c2 = contr(pp, cKV, cKV + 8, True)
    emit(A, c2[:12])
    RQ_(0); RQ_(1)
    emit(A, c2[12:])
    for n in range(2, nbuf - 1): RQ_(n)
    A('s_add_u32', sr(sT0), sr(sPs), 65536)
    VZ = cKV + 8
    A('v_min_u32', vr(cKV), -2, vr(cKV))
    A('buffer_store_dwordx4', vr(cKV, 4), vr(vPo), sr(sWS, 4), sr(sPs), mods='offen sc1')
    A('v_min_u32', vr(cKV+4), -2, vr(cKV+4))
    A('buffer_store_dwordx4', vr(cKV+4, 4), vr(vPo), sr(sWS, 4), sr(sT0), mods='offen sc1')
    A('v_min_u32', vr(VZ), -2, vr(VZ))
    A('buffer_store_dwordx4', vr(VZ, 4), vr(vZo), sr(sWS, 4), sr(sZs), mods='offen sc1')
    stamp(A, opt, 7)
    vK1, vK2, vZ1, vZ2, vOo, vLd, vRo = 6, 7, 8, 9, 10, 11, 12
    fillers = []
    F = lambda *a, **k: fillers.append((a, k))
    F('v_lshrrev_b32', vr(vT2), 3, vr(vT0))
    F('v_lshlrev_b32', vr(vK1), 8, vr(vT2))
    F('v_and_b32', vr(vT2), 3, vr(vL))
    F('v_lshl_add_u32', vr(vK1), vr(vT2), 5, vr(vK1))
    F('v_lshl_add_u32', vr(vK1), vr(vT1), 10, vr(vK1))
    F('s_lshl_b32', sr(sT2), sr(sHH), 11)
    F('s_xor_b32', sr(sT1), sr(sRG), 1)
    F('s_lshl_b32', sr(sT0), sr(sT1), 7)
    F('s_add_u32', sr(sT2), sr(sT2), sr(sT0))
    F('v_add_u32', vr(vK1), sr(sT2), vr(vK1))
    F('v_bfe_u32', vr(vT2), vr(vL), 2, 1)
    F('v_cmp_eq_u32', 'vcc', vr(vT2), vr(vT1))
    F('v_mov_b32', vr(vT3), OOB)
    F('v_cndmask_b32', vr(vK1), vr(vT3), vr(vK1), 'vcc')
    F('v_xor_b32', vr(vK2), 128, vr(vK1))
    F('s_lshl_b32', sr(sT2), sr(sHH), 7)
    F('s_lshl_b32', sr(sT0), sr(sT1), 5)
    F('s_add_u32', sr(sT2), sr(sT2), sr(sT0))
    F('s_add_u32', sr(sT2), sr(sT2), 32*128)
    F('v_lshl_add_u32', vr(vZ1), vr(vT1), 6, sr(sT2))
    F('v_xor_b32', vr(vZ2), 32, vr(vZ1))
    F('s_mul_i32', sr(sRs), sr(sHQ), RQ)
    F('s_add_u32', sr(sRs), sr(sRs), hex(G_R))
    F('v_bfe_u32', vr(vT2), vr(vL), 4, 1)
    F('v_lshlrev_b32', vr(vOo), 14, vr(vT2))
    F('v_and_b32', vr(vT2), 15, vr(vL))
    F('v_lshl_add_u32', vr(vOo), vr(vT2), 4, vr(vOo))
    F('v_lshl_add_u32', vr(vOo), vr(vT1), 9, vr(vOo))
    F('v_lshlrev_b32', vr(vRo), 3, vr(vT2))
    F('v_lshl_add_u32', vr(vRo), vr(vT1), 2, vr(vRo))
    F('v_lshlrev_b32', vr(vLd), 4, vr(vL))
    F('s_lshl_b32', sr(sT2), sr(sR), 1)
    F('s_add_u32', sr(sT2), sr(sT2), sr(sRG))
    F('s_lshl_b32', sr(sT2), sr(sT2), 4)
    F('s_add_u32', sr(sT2), sr(sT2), sr(sHQ))
    F('s_lshl_b32', sr(sT2), sr(sT2), 1)
    F('s_add_u32', sr(sT2), sr(sT2), sr(sHH))
    F('s_lshl_b32', sr(sOs), sr(sT2), 10)
    F('s_add_u32', sr(sOs), sr(sOs), hex(G_O))
    sCH = 57
    F('s_lshl_b32', sr(sT2), sr(sW), 5)
    F('s_add_u32', sr(sCH), sr(sT2), sr(sR))
    F('s_lshl_b32', sr(sT2), sr(sCH), 13)
    F('s_add_u32', sr(sLs), sr(sLs), sr(sT2))
    F('s_add_u32', sr(sPs), sr(sLs), 4096)
    F('s_lshl_b32', sr(sT2), sr(sCH), 7)
    F('s_add_u32', sr(sZs), sr(sRs), sr(sT2))
    for n in range(32):
        if n + nbuf - 1 < 32: RQ_(n + nbuf - 1)
        A('v_mfma_f32_32x32x16_bf16', vr(accQ, 16), vr(48 + 4*(n % nbuf), 4), ar(4*n, 4), '0' if n == 0 else vr(accQ, 16))
        for _ in range(2):
            if fillers and n >= 2:
                a, k = fillers.pop(0); A(*a, **k)
    assert not fillers
    stamp(A, opt, 8)
    PL = [104, 108, 112, 116, 120, 124, 72, 76]
    def pl_loads():
        for k in range(8):
            raw(A, f'buffer_load_dwordx4 v[{PL[k]}:{PL[k]+3}], v{vLd}, s[{sWS}:{sWS+3}], s{sPs if k >= 4 else sLs} offen' + (f' offset:{1024*(k & 3)}' if k & 3 else '') + ' sc1')
    A('s_cmp_ge_u32', sr(sCH), 34)
    A('s_cbranch_scc1', 'B_NOPL')
    pl_loads()
    A.label('B_NOPL')
    for k in range(8): A('v_cvt_pk_bf16_f32', vr(kp+k), vr(accQ+2*k), vr(accQ+2*k+1))
    A('v_mfma_f32_32x32x16_bf16', vr(pp, 16), vr(vPH, 4), vr(kp, 4), '0')
    A('v_mfma_f32_32x32x16_bf16', vr(pp, 16), vr(vPH+4, 4), vr(kp+4, 4), vr(pp, 16))
    emit(A, sm_pre(pp, tmp))
    emit(A, sm_half(0, pp, ph, tmp, pk))
    emit(A, sm_half(1, pp, ph, tmp, pk))
    stamp(A, opt, 9)
    A('s_cmp_ge_u32', sr(sCH), 34)
    A('s_cbranch_scc1', 'B_NORED')
    bound_init(A)
    A.label('B_RCHK')
    A('s_waitcnt', 'vmcnt(0)')
    maxtree(A, PL, 16)
    A('v_cmp_eq_u32', 'vcc', -1, vr(16))
    A('s_cbranch_vccz', 'B_ROK')
    bound_step(A, 'B_ROK')
    pl_loads()
    A('s_branch', 'B_RCHK')
    A.label('B_ROK')
    for (a, b) in [(0, 1), (2, 3), (4, 5), (6, 7), (0, 2), (4, 6), (0, 4)]:
        for k in range(4): A('v_add_f32', vr(PL[a]+k), vr(PL[a]+k), vr(PL[b]+k))
    q = PL[0]
    A('v_permlane32_swap_b32', vr(q), vr(q+2))
    A('v_permlane32_swap_b32', vr(q+1), vr(q+3))
    A('v_add_f32', vr(q), vr(q), vr(q+2))
    A('v_add_f32', vr(q+1), vr(q+1), vr(q+3))
    A('v_mov_b32', vr(q+2), vr(q))
    A('v_mov_b32', vr(q+3), vr(q+1))
    A('v_permlane16_swap_b32', vr(q), vr(q+2))
    A('v_permlane16_swap_b32', vr(q+1), vr(q+3))
    A('v_add_f32', vr(q), vr(q), vr(q+2))
    A('v_add_f32', vr(q+1), vr(q+1), vr(q+3))
    A('v_cvt_pk_bf16_f32', vr(q), vr(q), vr(q+1))
    A('s_mov_b32', 'exec_lo', '0xffff')
    A('s_mov_b32', 'exec_hi', '0xffff')
    A('v_min_u32', vr(q), -2, vr(q))
    A('buffer_store_dword', vr(q), vr(vRo), sr(sWS, 4), sr(sZs), mods='offen sc1')
    A('s_mov_b64', 'exec', -1)
    A.label('B_NORED')
    A.fence()
    stamp(A, opt, 10)
    tA, tZ, num, den = 32, 48, 16, 64
    bound_init(A)
    A.label('B_POLL')
    bound_step(A, 'B_POLX')
    for j in range(4):
        A('buffer_load_dwordx4', vr(tA + 4*j, 4), vr(vK2 if j >> 1 else vK1), sr(sWS, 4), sr(sRs), mods='offen' + (' offset:16' if j & 1 else '') + ' sc1')
    for j in range(4):
        A('buffer_load_dwordx4', vr(tZ + 4*j, 4), vr(vZ2 if j >> 1 else vZ1), sr(sWS, 4), sr(sRs), mods='offen' + (' offset:16' if j & 1 else '') + ' sc1')
    maxtree(A, range(tA, tA + 32), 66)
    A('v_cmp_eq_u32', 'vcc', -1, vr(66))
    A('s_cbranch_vccnz', 'B_POLL')
    A.label('B_POLX')
    A('s_waitcnt', 'vmcnt(0)')
    stamp(A, opt, 11)
    for j in range(4):
        A('v_mfma_f32_32x32x16_bf16', vr(num, 16), vr(tA + 4*j, 4), vr(ph + 4*j, 4), '0' if j == 0 else vr(num, 16))
    for k in range(16):
        d = den + (k & 1)
        A('v_dot2_f32_bf16', vr(d), vr(ph + k), vr(tZ + k), '0' if k < 2 else vr(d))
    A('v_add_f32', vr(den), vr(den), vr(den+1))
    A('v_add_f32', vr(den), f2u(1e-6), vr(den))
    A('v_rcp_f32', vr(den), vr(den))
    o = 68
    for k in range(8):
        A('v_mul_f32', vr(num+2*k), vr(num+2*k), vr(den))
        A('v_mul_f32', vr(num+2*k+1), vr(num+2*k+1), vr(den))
        A('v_cvt_pk_bf16_f32', vr(o+k), vr(num+2*k), vr(num+2*k+1))
        if k & 3 == 0: A('v_min_u32', vr(o+k), -2, vr(o+k))
        if k == 3: A('buffer_store_dwordx4', vr(o, 4), vr(vOo), sr(sWS, 4), sr(sOs), mods='offen sc1')
        if k == 7: A('buffer_store_dwordx4', vr(o+4, 4), vr(vOo), sr(sWS, 4), sr(sOs), mods='offen offset:256 sc1')
    stamp(A, opt, 12)
    if opt.get('stamps'):
        A('s_waitcnt', 'vmcnt(0)')
        stamp(A, opt, 13)
        stamp(A, opt, 14)
        flush3(A, opt, 15)
    A('s_endpgm')
```

```python
import sys
from common3 import *
import gen_b5, gen_a3
from gen import header, KNAME
def gen_g(opt):
    A = Asm()
    SAFE[0] = bool(opt.get('safe'))
    if opt.get('rt'): stamp(A, opt, 15)
    A('s_cmp_ge_u32', 's2', 512)
    A('s_cbranch_scc1', 'G_END')
    A('s_load_dwordx16', 's[8:23]', 's[0:1]', 0)
    A('s_load_dwordx8', 's[24:31]', 's[0:1]', 64)
    A('s_load_dwordx4', 's[32:35]', 's[0:1]', 96)
    A('s_load_dwordx2', 's[36:37]', 's[0:1]', 112)
    A('v_lshrrev_b32', 'v2', 6, 'v0')
    A('v_and_b32', 'v1', 63, 'v0')
    A('v_readfirstlane_b32', 's4', 'v2')
    A('s_cmp_ge_u32', 's2', 256)
    A('s_cbranch_scc1', 'A_ROLE')
    gen_b5.gen_b(A, opt)
    A.label('A_ROLE')
    A.fence()
    gen_a3.gen_a(A, opt)
    A.label('G_END')
    A('s_endpgm')
    return A
def generate(opt):
    txt = header()
    body = '.amdgcn_target "amdgcn-amd-amdhsa--gfx950"\n.text\n'
    A = gen_g(opt)
    name = 'mix_g_kernel'
    txt += f'; @launch kernel={name} grid=(512,1,1) block=(256,1,1) lds=81920\n'
    body += khead(name) + A.finalize() + kdesc(name, 256, 128)
    print('stats', A.stats, file=sys.stderr)
    return txt + body
if __name__ == '__main__':
    opt = {}
    out = 'g.s'
    for a in sys.argv[1:]:
        if a.startswith('out='): out = a[4:]
        elif '=' in a:
            k, v = a.split('=', 1); opt[k] = eval(v)
        else: opt[a] = True
    open(out, 'w').write(generate(opt))
    print('wrote', out)
```
